```python
import torch

def _softmax(x, axis=-1):
    return torch.softmax(x, dim=axis)
def _gelu(x):
    return torch.nn.functional.gelu(x, approximate="tanh")
def _silu(x):
    return torch.nn.functional.silu(x)
def _sigmoid(x):
    return torch.sigmoid(x)
def _layernorm(x, axis=-1, eps=1e-5):
    m = x.mean(dim=axis, keepdim=True)
    v = x.var(dim=axis, keepdim=True, unbiased=False)
    return (x - m) / torch.sqrt(v + eps)
def _scatter_add(tgt, idx, src, axis=0):
    return tgt.clone().index_add_(axis, idx, src)
def _segment_sum(src, seg, n):
    out = torch.zeros((n,) + src.shape[1:], dtype=src.dtype)
    return out.index_add_(0, seg, src)
def _pad(x, pw):
    flat = tuple(v for pair in reversed(pw) for v in pair)
    return torch.nn.functional.pad(x, flat)

kernel_name = 'standalone__sequential_behavior_din__recsys'

def setup_inputs():

    _w = (lambda a: (lambda t: t.to(torch.bfloat16) if t.is_floating_point() else t)(torch.as_tensor(a)))
    B, L, D = 1024, 200, 128
    H = D
    return {
        "target": _w((lambda *s: torch.randn(*s, dtype=torch.bfloat16) * 1.6)(B, D)),
        "hist": _w((lambda *s: torch.randn(*s, dtype=torch.bfloat16) * 1.6)(B, L, D)),
        "mask": _w((lambda lo, hi, *s: torch.randint(lo, hi, s))(0, 2, B, L).to(float)),
        "w1": _w((lambda *s: torch.randn(*s, dtype=torch.bfloat16) * 1.6)(4 * D, H) * (4 * D) ** -0.5),
        "b1": _w((lambda *s: torch.randn(*s, dtype=torch.bfloat16) * 1.6)(H) * 0.1),
        "w2": _w((lambda *s: torch.randn(*s, dtype=torch.bfloat16) * 0.05)(H, 1) * H ** -0.5),
        "b2": _w((lambda *s: torch.randn(*s, dtype=torch.bfloat16) * 0.05)(1) * 0.1),
    }

def reference(target, hist, mask, w1, b1, w2, b2):
    L = hist.shape[1]
    tgt = (lambda x, n, axis: torch.repeat_interleave(x, n, dim=axis))(target[:, None, :], L, axis=1)
    feat = torch.concatenate([hist, tgt, hist - tgt, hist * tgt], axis=-1)
    h = _sigmoid(feat @ w1 + b1)
    scores = (h @ w2 + b2)[..., 0] * mask
    return torch.einsum('bl,bld->bd', scores, hist)
```

```python
import re

TRANS = ("v_exp_f32", "v_rcp_f32", "v_log_f32", "v_rsq_f32", "v_sqrt_f32", "v_sin_f32", "v_cos_f32")
REG_RE = re.compile(r"^(-)?([vas])(?:(\d+)|\[(\d+):(\d+)\])$")


def regs_of(tok):
    tok = tok.strip()
    if tok in ("vcc",):
        return {"vcc"}
    if tok in ("exec",):
        return {"exec"}
    if tok == "m0":
        return {"m0"}
    m = REG_RE.match(tok)
    if not m:
        return set()
    f = m.group(2)
    if m.group(3) is not None:
        return {f + m.group(3)}
    return {f + str(i) for i in range(int(m.group(4)), int(m.group(5)) + 1)}


class Ins:
    def __init__(self, text):
        self.text = text
        t = text.split(";")[0].strip()
        self.label = None
        self.mn = ""
        self.reads = set()
        self.writes = set()
        self.kind = "other"
        self.srcC = set()
        self.srcAB = set()
        self.passes = 0
        self.states = 1
        self.target = None
        self.dpp = False
        if t.endswith(":"):
            self.label = t[:-1]
            self.kind = "label"
            self.states = 0
            return
        if t.startswith(".") or not t:
            self.kind = "directive"
            self.states = 0
            return
        parts = t.split(None, 1)
        mn = parts[0]
        self.mn = mn
        rest = parts[1] if len(parts) > 1 else ""
        ops = []
        depth = 0
        cur = ""
        for ch in rest:
            if ch == "[":
                depth += 1
            if ch == "]":
                depth -= 1
            if ch == "," and depth == 0:
                ops.append(cur.strip())
                cur = ""
            else:
                cur += ch
        if cur.strip():
            ops.append(cur.strip())
        mods = ""
        if ops:
            lp = ops[-1].split(None, 1)
            ops[-1] = lp[0]
            mods = lp[1] if len(lp) > 1 else ""
        self.ops = ops
        self.mods = mods
        R = [regs_of(o) for o in ops]
        if mn.startswith("v_mfma"):
            self.kind = "mfma"
            self.passes = 8 if "32x32" in mn else 4
            self.writes = R[0]
            self.srcAB = R[1] | R[2]
            self.srcC = R[3]
            self.reads = self.srcAB | self.srcC
        elif mn.startswith("v_"):
            self.kind = "trans" if mn.replace("_e32", "").replace("_e64", "") in TRANS else "valu"
            if "dpp" in mn or "quad_perm" in mods or "row_" in mods:
                self.dpp = True
            if mn.startswith(("v_addc_co", "v_add_co", "v_sub_co", "v_subb_co")):
                self.writes = R[0] | R[1]
                self.reads = set().union(*R[2:])
            elif mn.startswith("v_permlane"):
                self.writes = R[0] | R[1]
                self.reads = R[0] | R[1]
            elif mn.startswith(("v_fmac", "v_dot2c")):
                self.writes = R[0]
                self.reads = set().union(*R)
            else:
                self.writes = R[0]
                self.reads = set().union(*R[1:]) if len(R) > 1 else set()
                if self.dpp:
                    self.reads |= R[0]
        elif mn.startswith("ds_"):
            self.kind = "ds"
            if mn.startswith(("ds_read", "ds_bpermute", "ds_permute", "ds_swizzle")):
                self.writes = R[0]
                self.reads = set().union(*R[1:])
            else:
                self.reads = set().union(*R)
        elif mn.startswith(("buffer_", "global_")):
            self.kind = "vmem"
            is_lds = bool(re.search(r"\blds\b", mods)) or "_lds_" in mn
            self.lds = is_lds
            if "load" in mn and not is_lds:
                self.writes = R[0]
                self.reads = set().union(*R[1:])
            else:
                self.reads = set().union(*R)
                if is_lds:
                    self.reads |= {"m0"}
            self.wide_store = "store" in mn and ("x4" in mn or "x3" in mn)
            if self.wide_store:
                self.sdata = R[0] if mn.startswith("buffer_") else R[1]
        elif mn.startswith("s_"):
            self.kind = "salu"
            if mn == "s_nop":
                self.states = int(ops[0], 0) + 1
            elif mn.startswith(("s_branch", "s_cbranch")):
                self.kind = "branch"
                self.target = ops[0]
            elif mn in ("s_endpgm",):
                self.kind = "end"
            elif mn.startswith(("s_cmp", "s_waitcnt", "s_barrier", "s_setprio", "s_sleep")):
                self.reads = set().union(*R) if R else set()
            else:
                self.writes = R[0] if R else set()
                self.reads = set().union(*R[1:]) if len(R) > 1 else set()


def is_vec(r):
    return r[0] in "va" and r not in ("vcc",)


def required(P, C):
    need = 0
    pv = P.kind in ("valu", "trans")
    cv = C.kind in ("valu", "trans")
    if pv and C.kind == "mfma" and (P.writes & C.reads):
        need = max(need, 3 if P.kind == "trans" else 2)
    if P.kind == "mfma":
        D = P.writes
        if C.kind == "mfma":
            if D & C.srcAB:
                need = max(need, P.passes + 4)
            if D & C.srcC:
                if not (D == C.srcC and P.passes == C.passes):
                    need = max(need, P.passes + 2)
            if (D & C.writes) and not (D == C.srcC and P.passes == C.passes):
                need = max(need, P.passes + 2)
        elif cv or C.kind in ("ds", "vmem"):
            if D & (C.reads | C.writes):
                need = max(need, P.passes + 4)
        if (cv or C.kind in ("ds", "vmem")) and (P.srcC & C.writes):
            need = max(need, P.passes - 1)
    if P.kind == "trans" and C.kind == "valu" and (P.writes & C.reads):
        need = max(need, 1)
    if P.kind == "trans" and C.kind in ("ds", "vmem") and (P.writes & C.reads):
        need = max(need, 1)
    if pv:
        sw = {r for r in P.writes if not is_vec(r)}
        if sw:
            if cv and (sw & C.reads):
                need = max(need, 4 if C.mn.startswith(("v_readlane", "v_writelane")) else 2)
            if C.kind == "vmem" and (sw & C.reads):
                need = max(need, 5)
            if C.kind in ("salu", "branch") and (sw & C.reads):
                need = max(need, 1)
        vw = {r for r in P.writes if is_vec(r)}
        if vw:
            if C.mn.startswith(("v_readfirstlane", "v_readlane")) and (vw & C.reads):
                need = max(need, 1)
            if cv and (C.dpp or C.mn.startswith("v_permlane")) and (vw & C.reads):
                need = max(need, 2)
    if P.kind == "salu" and "m0" in P.writes and C.kind == "vmem" and "m0" in C.reads:
        need = max(need, 1)
    if P.kind == "vmem" and getattr(P, "wide_store", False) and (P.sdata & C.writes):
        need = max(need, 2 if cv else 1)
    return need


MAXD = 14


class Asm:
    def __init__(self):
        self.ins = []

    def __call__(self, text):
        for line in text.strip().split("\n"):
            line = line.strip()
            if line:
                self.ins.append(Ins(line))

    def extend(self, lst):
        for l in lst:
            self(l)

    def _preds(self):
        lab = {x.label: i for i, x in enumerate(self.ins) if x.label}
        preds = [[] for _ in self.ins]
        for i, x in enumerate(self.ins):
            if x.kind == "end":
                continue
            if x.kind == "branch":
                preds[lab[x.target]].append(i)
                if x.mn == "s_branch":
                    continue
            if i + 1 < len(self.ins):
                preds[i + 1].append(i)
        return preds

    def pad(self, verbose=False):
        total = 0
        changed = True
        while changed:
            changed = False
            preds = self._preds()
            for i, C in enumerate(self.ins):
                if C.kind in ("label", "directive"):
                    continue
                short = 0
                why = None
                stack = [(p, 0) for p in preds[i]]
                seen = {}
                while stack:
                    j, d = stack.pop()
                    if seen.get(j, 99) <= d:
                        continue
                    seen[j] = d
                    P = self.ins[j]
                    if P.kind not in ("label", "directive"):
                        n = required(P, C)
                        if n - d > short:
                            short = n - d
                            why = P
                    nd = d + P.states
                    if nd < MAXD:
                        for p in preds[j]:
                            stack.append((p, nd))
                if short > 0:
                    if verbose:
                        print(f"pad {short} before [{C.text}] due to [{why.text}]")
                    self.ins.insert(i, Ins(f"s_nop {short - 1}"))
                    total += short
                    changed = True
                    break
        return total

    def text(self):
        out = []
        for x in self.ins:
            if x.kind == "label":
                out.append(x.text)
            else:
                out.append("  " + x.text)
        return "\n".join(out) + "\n"


def interleave(*streams_with_weights):
    items = []
    for s in streams_with_weights:
        n = len(s)
        for k, x in enumerate(s):
            items.append(((k + 0.5) / n, len(items), x))
    items.sort(key=lambda t: (t[0], t[1]))
    return [x for _, _, x in items]
```

```python
import sys
import os

sys.path.insert(0, os.path.dirname(os.path.abspath(__file__)))
from asmlib import Asm, interleave

NAME = "standalone__sequential_behavior_din__recsys"
OPT = dict(a.split("=") if "=" in a else (a, "1") for a in sys.argv[2:])
STAMP = int(OPT.get("stamp", 0))
HIST_POL = OPT.get("hpol", "nt").replace("+", " ").replace("none", "")
MASK_POL = OPT.get("mpol", "none").replace("+", " ").replace("none", "")

PA = 0
QD = 65536
SB = 98304
SS = 131072
SSTR = 5120
S_ROW, S_MSK, S_T, S_W2, S_B1, S_CPK = 0, 1024, 2048, 3072, 4096, 4608
LDS_BYTES = SS + 4 * SSTR

V_LANE = 1
V_F = 2
V_T = 10
V_W = 18
V_MV = 19
V_CPK = 20
V_HALF = 24
ONES = {2: 26, 0: 28, 3: 30, 1: 32}
V_B2 = 36
V_SC = 40
V_MVAL = 44
V_APK = 48
V_HP = 52
V_TMP = 60
ACC = 64
WE = 128
A_ST = 0
A_F = 128
A_TR = 160
A_W2 = 192
A_O = 224


def v(i, n=1):
    return f"v{i}" if n == 1 else f"v[{i}:{i + n - 1}]"


def a(i, n=1):
    return f"a{i}" if n == 1 else f"a[{i}:{i + n - 1}]"


def s(i, n=1):
    return f"s{i}" if n == 1 else f"s[{i}:{i + n - 1}]"


M32 = "v_mfma_f32_32x32x16_bf16"
M16 = "v_mfma_f32_16x16x32_bf16"

A = Asm()
nstamp = [0]


def stamp():
    if not STAMP:
        return
    k = nstamp[0]
    nstamp[0] += 1
    A(f"s_memrealtime s[34:35]")
    A("s_waitcnt lgkmcnt(0)")
    A(f"s_mov_b32 s{86 + k}, s34")


SRD_H, SRD_M, SRD_T, SRD_W1, SRD_B1, SRD_W2, SRD_O = 36, 40, 44, 48, 52, 56, 60

A(f"{NAME}_kernel:")
A("s_cmp_ge_u32 s2, 256")
A("s_cbranch_scc1 L_end")
A("s_load_dwordx16 s[16:31], s[0:1], 0")
if STAMP:
    A("s_load_dwordx2 s[84:85], s[0:1], 72")
A("s_getpc_b64 s[12:13]")
A("L_pc:")
A(f"v_and_b32 {v(V_LANE)}, 63, v0")
A("v_lshrrev_b32 v60, 6, v0")
A(f"v_lshlrev_b32 v61, 7, v0")
A("v_readfirstlane_b32 s4, v60")
A("v_min_u32 v61, L_codeend-L_pc-4, v61")
A("global_load_dword v62, v61, s[12:13]")
stamp()
A("s_lshl_b32 s5, s2, 2")
A("s_add_u32 s5, s5, s4")
A(f"s_mul_i32 s10, s4, {SSTR}")
A(f"s_add_u32 s10, s10, {SS}")
A("s_lshl_b32 s11, s4, 13")
A(f"s_add_u32 s11, s11, {SB}")
A("s_mov_b32 s33, 0xbfb8aa3b")
for r, n in ((SRD_H, 51200), (SRD_M, 400), (SRD_T, 1024), (SRD_W1, 131072), (SRD_B1, 256), (SRD_W2, 256), (SRD_O, 256)):
    A(f"s_mov_b32 s{r + 2}, {n}")
    A(f"s_mov_b32 s{r + 3}, 0x20000")
L = v(V_LANE)
A(f"v_lshlrev_b32 v64, 3, {L}")
A(f"v_lshlrev_b32 v65, 4, {L}")
A(f"v_lshlrev_b32 v66, 2, {L}")
A(f"v_lshrrev_b32 v67, 2, {L}")
A(f"v_lshlrev_b32 v67, 8, v67")
A(f"v_and_b32 v68, 3, {L}")
A(f"v_lshl_add_u32 v67, v68, 4, v67")
A("s_lshl_b32 s7, s4, 6")
A("v_add_u32 v67, s7, v67")
A("v_mov_b32 v69, 0")
A("s_mul_i32 s14, s5, 400")
A("s_mul_i32 s15, s5, 51200")
A("s_waitcnt lgkmcnt(0)")
A(f"s_add_u32 s{SRD_M}, s20, s14")
A(f"s_addc_u32 s{SRD_M + 1}, s21, 0")
A(f"buffer_load_dwordx2 v[70:71], v64, {s(SRD_M, 4)}, 0 offen {MASK_POL}")
A("s_lshl_b32 s7, s2, 10")
A(f"s_add_u32 s{SRD_T}, s16, s7")
A(f"s_addc_u32 s{SRD_T + 1}, s17, 0")
A(f"s_add_u32 m0, s10, {S_T}")
A(f"s_mov_b32 s{SRD_W2}, s26")
A(f"buffer_load_dwordx4 v65, {s(SRD_T, 4)}, 0 offen lds")
A(f"s_mov_b32 s{SRD_W2 + 1}, s27")
A(f"s_add_u32 m0, s10, {S_W2}")
A(f"s_mov_b32 s{SRD_B1}, s24")
A(f"buffer_load_dwordx4 v65, {s(SRD_W2, 4)}, 0 offen lds")
A(f"s_mov_b32 s{SRD_B1 + 1}, s25")
A(f"s_add_u32 m0, s10, {S_B1}")
A(f"s_mov_b32 s{SRD_W1}, s22")
A(f"buffer_load_dword v66, {s(SRD_B1, 4)}, 0 offen lds")
A(f"s_mov_b32 s{SRD_W1 + 1}, s23")
A(f"global_load_ushort {v(V_B2)}, v69, s[28:29]")
A("s_lshl_b32 s14, s4, 14")
A("s_lshl_b32 s7, s4, 13")
for (row0, base_s, base_c) in ((256, "s14", PA + 8192), (0, "s14", PA), (128, "s7", SB), (384, "s7", QD)):
    for q in range(8):
        if q % 4 == 0:
            A(f"s_add_u32 m0, {base_s}, {base_c + q * 1024}")
        imm = (q % 4) * 1024
        so = row0 * 256 + q * 4096 - imm
        A(f"s_mov_b32 s3, {so}")
        A(f"buffer_load_dwordx4 v67, {s(SRD_W1, 4)}, s3 offen offset:{imm} lds")
A(f"s_add_u32 s{SRD_H}, s18, s15")
A(f"s_addc_u32 s{SRD_H + 1}, s19, 0")
A("s_lshl_b32 s7, s5, 8")
A(f"s_add_u32 s{SRD_O}, s30, s7")
A(f"s_addc_u32 s{SRD_O + 1}, s31, 0")

A("v_add_u32 v73, s10, v65")
A("v_mov_b32 v76, 0x40000000")
A("v_mov_b32 v77, 0x40000000")
A("v_mov_b32 v78, 0x40000000")
A("v_mov_b32 v79, 0x40000000")
A("v_mov_b32 v80, 0")
A("v_mov_b32 v81, 0")
A("v_mov_b32 v82, 0")
A("v_mov_b32 v83, 0")
A(f"ds_write_b128 v73, v[76:79] offset:{S_ROW}")
A(f"ds_write_b128 v73, v[80:83] offset:{S_MSK}")
A(f"v_lshlrev_b32 v84, 10, {L}")
A("v_add_u32 v85, 0x100, v84")
A("v_add_u32 v86, 0x200, v84")
A("v_add_u32 v87, 0x300, v84")
A(f"v_and_b32 v88, 15, {L}")
A(f"v_lshrrev_b32 v89, 4, {L}")
A(f"v_lshrrev_b32 v90, 5, {L}")
A(f"v_and_b32 v91, 31, {L}")
A("v_lshlrev_b32 v92, 11, v89")
A("v_lshl_add_u32 v92, v88, 4, v92")
A(f"v_add_u32 {v(V_W)}, s11, v92")
A("v_and_b32 v92, 7, v91")
A("v_bfe_u32 v93, v91, 3, 1")
A("v_lshl_or_b32 v92, v92, 1, v93")
A("v_xor_b32 v92, v92, v90")
A("v_lshlrev_b32 v92, 4, v92")
A("v_lshl_add_u32 v92, v91, 8, v92")
A(f"v_add_u32 {v(V_F)}, s11, v92")
for ks in range(1, 8):
    A(f"v_xor_b32 {v(V_F + ks)}, {ks << 5}, {v(V_F)}")
A(f"v_lshrrev_b32 v92, 2, {L}")
A("v_and_b32 v93, 7, v92")
A("v_lshrrev_b32 v94, 3, v92")
A("v_lshl_or_b32 v93, v93, 1, v94")
A(f"v_bfe_u32 v94, {L}, 1, 1")
A("v_xor_b32 v93, v93, v94")
A("v_lshlrev_b32 v93, 4, v93")
A("v_lshl_add_u32 v93, v92, 8, v93")
A(f"v_and_b32 v94, 1, {L}")
A("v_lshl_add_u32 v93, v94, 3, v93")
A(f"v_add_u32 {v(V_T)}, s11, v93")
for dt in range(1, 8):
    A(f"v_xor_b32 {v(V_T + dt)}, {dt << 5}, {v(V_T)}")
A("v_lshlrev_b32 v92, 6, v94")
A("v_lshl_add_u32 v92, v89, 4, v92")
A(f"v_add_u32 v92, {S_MSK}, v92")
A(f"v_add_u32 {v(V_TMP)}, s10, v92")
A("v_lshlrev_b32 v92, 5, v89")
A(f"v_add_u32 {v(V_TMP + 1)}, s10, v92")
A("v_and_b32 v92, 1, v89")
A("v_xor_b32 v92, v92, v88")
A(f"v_lshlrev_b32 {v(V_TMP + 3)}, 4, v92")
A(f"v_mov_b32 {v(V_HALF)}, 0x3f003f00")
for r in range(V_HALF + 1, V_HALF + 12):
    A(f"v_mov_b32 v{r}, 0")
A("v_cmp_gt_u32 vcc, 32, v1")
A("v_mov_b32 v92, 0x3f803f80")
A(f"v_cndmask_b32 v28, 0, v92, vcc")
A(f"v_cndmask_b32 v33, 0, v92, vcc")
for r in range(32):
    A(f"v_accvgpr_write_b32 {a(A_O + r)}, 0")
A("v_and_b32 v95, 0x13, v91")
A("v_bfe_u32 v92, v91, 2, 1")
A("v_lshl_or_b32 v95, v92, 3, v95")
A("v_bfe_u32 v93, v91, 3, 1")
A("v_lshl_or_b32 v95, v93, 2, v95")
A("v_lshrrev_b32 v93, 2, v91")
A("v_and_b32 v93, 6, v93")
A("v_bfe_u32 v96, v91, 1, 1")
A("v_or_b32 v93, v93, v96")
A("v_lshlrev_b32 v96, 4, v94")
A("v_mov_b32 v97, 0xffff")
A("v_lshlrev_b32 v96, v96, v97")
A("v_cmp_eq_u32 vcc, v92, v90")
A("v_cndmask_b32 v96, 0, v96, vcc")
for x in range(8):
    A(f"v_cmp_eq_u32 {s(64 + 2 * x, 2)}, {x}, v93")
for x in range(8):
    A(f"v_cndmask_b32 v{232 + x}, 0, v96, {s(64 + 2 * x, 2)}")
for x in range(8):
    A(f"v_and_b32 v{224 + x}, 0x3f803f80, v{232 + x}")
A("v_lshrrev_b32 v92, 2, v88")
A("v_lshl_add_u32 v92, v90, 3, v92")
A("v_lshlrev_b32 v92, 6, v92")
A("v_and_b32 v93, 1, v89")
A("v_lshl_add_u32 v92, v93, 5, v92")
A("v_lshl_add_u32 v92, v94, 4, v92")
A(f"v_bfe_u32 v93, {L}, 1, 1")
A("v_lshl_add_u32 v98, v93, 3, v92")
P_TRA, P_TRB, P_TRQ, P_PW, P_PR, P_TF, P_TV, P_B1, P_W2, P_CW, P_CR = range(40, 51)
A("s_lshl_b32 s7, s4, 14")
A(f"v_add_u32 v{P_TRA}, s7, v98")
A(f"v_add_u32 v{P_TRB}, s11, v98")
A(f"v_add_u32 v{P_TRQ}, {QD}, v98")
A(f"v_add_u32 v{P_PW}, s7, v65")
A(f"v_mov_b32 v{P_PR}, v65")
A("v_lshlrev_b32 v92, 8, v68")
A("v_lshl_add_u32 v92, v90, 4, v92")
A(f"v_add_u32 v{P_TF}, s10, v92")
A("s_lshl_b32 s7, s4, 8")
A("s_add_u32 s7, s7, s10")
A(f"v_lshl_add_u32 v{P_TV}, v95, 1, s7")
A("s_lshl_b32 s7, s4, 6")
A("s_add_u32 s7, s7, s10")
A(f"v_lshl_add_u32 v{P_B1}, v95, 1, s7")
A("v_and_b32 v92, 1, v89")
A("v_cmp_eq_u32 vcc, v92, v94")
A("v_lshlrev_b32 v92, 4, v90")
A("v_mov_b32 v93, 0x100")
A("v_cndmask_b32 v92, v93, v92, vcc")
A(f"v_add_u32 v{P_W2}, s10, v92")
A("s_lshl_b32 s7, s4, 2")
A(f"s_add_u32 s7, s7, {SS}")
A(f"v_lshl_add_u32 v{P_CW}, v91, 4, s7")
A(f"v_lshl_add_u32 v{P_CR}, v91, 4, s10")

A("s_waitcnt vmcnt(32)")
stamp()
A("v_lshlrev_b32 v100, 16, v70")
A("v_and_b32 v101, 0xffff0000, v70")
A("v_lshlrev_b32 v102, 16, v71")
A("v_and_b32 v103, 0xffff0000, v71")
for j in range(4):
    A(f"v_cmp_neq_f32 {s(64 + 2 * j, 2)}, 0, v{100 + j}")
A("v_mbcnt_lo_u32_b32 v104, s64, 0")
A("s_bcnt1_i32_b64 s12, s[64:65]")
A("v_mbcnt_hi_u32_b32 v104, s65, v104")
A("s_bcnt1_i32_b64 s13, s[66:67]")
A("v_mbcnt_lo_u32_b32 v104, s66, v104")
A("s_bcnt1_i32_b64 s14, s[68:69]")
A("v_mbcnt_hi_u32_b32 v104, s67, v104")
A("s_bcnt1_i32_b64 s15, s[70:71]")
A("v_mbcnt_lo_u32_b32 v104, s68, v104")
A("s_add_u32 s12, s12, s13")
A("v_mbcnt_hi_u32_b32 v104, s69, v104")
A("s_add_u32 s14, s14, s15")
A("v_mbcnt_lo_u32_b32 v104, s70, v104")
A("s_add_u32 s12, s12, s14")
A("v_mbcnt_hi_u32_b32 v104, s71, v104")
A("s_sub_u32 s12, 0x100, s12")
A("v_addc_co_u32 v105, s[72:73], v104, 0, s[64:65]")
A("s_lshr_b32 s9, s12, 5")
A("v_addc_co_u32 v106, s[72:73], v105, 0, s[66:67]")
A("s_lshl_b32 s12, s12, 2")
A("v_addc_co_u32 v107, s[72:73], v106, 0, s[68:69]")
A("s_add_u32 s12, s12, s10")
for j in range(4):
    A(f"v_lshl_add_u32 v{104 + j}, v{104 + j}, 2, s12")
for j in range(4):
    A(f"s_mov_b64 exec, {s(64 + 2 * j, 2)}")
    A(f"ds_write2st64_b32 v{104 + j}, v{84 + j}, v{100 + j} offset0:0 offset1:4")
A("s_mov_b64 exec, -1")
A("s_lshr_b32 s8, s9, 2")
A("s_min_u32 s8, s8, 1")
A("s_mov_b32 s32, 1")

A("L_chunk:")
A("s_lshl_b32 s7, s8, 9")
A(f"v_add_u32 v62, s7, {v(V_TMP + 1)}")
EN = 64
for jb in range(4):
    A(f"ds_read_b128 {v(EN + 8 * jb, 4)}, v62 offset:{S_ROW + 128 * jb}")
    A(f"ds_read_b128 {v(EN + 8 * jb + 4, 4)}, v62 offset:{S_ROW + 128 * jb + 16}")
for q in range(8):
    A(f"v_xor_b32 v{96 + q}, {q << 5}, {v(V_TMP + 3)}")
for jb in range(4):
    for q in range(8):
        if q % 4 == 0:
            A(f"s_waitcnt lgkmcnt({7 - 2 * jb - q // 4})")
        e = EN + 8 * jb + q
        A(f"v_add_u32 v{e}, v{e}, v{96 + q}")
        A(f"buffer_load_dwordx4 {a(A_ST + 32 * jb + 4 * q, 4)}, v{e}, {s(SRD_H, 4)}, 0 offen {HIST_POL}")
A("s_lshl_b32 s6, s8, 2")
A("s_max_u32 s6, s6, s9")
A("s_cmp_eq_u32 s32, 0")
A("s_cbranch_scc1 L_blocks")
A("s_mov_b32 s32, 0")
stamp()

for dt in range(4):
    A(f"ds_read_u16 v{104 + dt}, v{P_TV} offset:{S_T + 64 * dt}")
A(f"ds_read_u16 v108, v{P_B1} offset:{S_B1}")
for q in range(8):
    A(f"ds_read_b128 {a(A_W2 + 4 * q, 4)}, v{P_W2} offset:{S_W2 + 32 * q}")
A(f"v_lshlrev_b32 {v(V_B2)}, 16, {v(V_B2)}")
for r in range(1, 4):
    A(f"v_mov_b32 {v(V_B2 + r)}, {v(V_B2)}")
A("s_waitcnt lgkmcnt(8)")
for dt in range(4):
    A(f"v_lshlrev_b32 v{104 + dt}, 16, v{104 + dt}")
A("v_lshlrev_b32 v51, 16, v108")
for dt in range(4):
    A(f"v_mul_f32 v{104 + dt}, s33, v{104 + dt}")
for dt in range(4):
    A(f"v_cvt_pk_bf16_f32 v{104 + dt}, v{104 + dt}, v{104 + dt}")
for ks in range(8):
    A(f"ds_read_b128 {a(A_TR + 4 * ks, 4)}, v{P_TF} offset:{S_T + 32 * ks}")
for dt in range(4):
    for x in range(8):
        A(f"v_and_b32 v{112 + x}, v{104 + dt}, v{232 + x}")
    for x in range(8):
        A(f"v_accvgpr_write_b32 {a(A_F + 8 * dt + x)}, v{112 + x}")

WA, WC, WB, IDF, DC = 128, 160, 192, 224, 240
A("s_waitcnt vmcnt(56)")
for ks in range(8):
    for j2 in range(2):
        A(f"ds_read_b64_tr_b16 {v(WC + 4 * ks + 2 * j2, 2)}, v{P_TRA} offset:{8192 + ks * 1024 + j2 * 256}")
A("s_waitcnt lgkmcnt(0)")
for ks in range(8):
    A(f"{M32} {v(DC, 16)}, {a(A_TR + 4 * ks, 4)}, {v(WC + 4 * ks, 4)}, {'0' if ks == 0 else v(DC, 16)}")
A("s_waitcnt vmcnt(48)")
stamp()
rd = []
for ks in range(8):
    for j2 in range(2):
        rd.append(f"ds_read_b64_tr_b16 {v(WA + 4 * ks + 2 * j2, 2)}, v{P_TRA} offset:{ks * 1024 + j2 * 256}")
mm = []
for dt in range(4):
    for u in range(2):
        mm.append(f"{M32} {v(ACC + 16 * dt, 16)}, {v(IDF + 4 * u, 4)}, {v(WC + 4 * (2 * dt + u), 4)}, {'0' if u == 0 else v(ACC + 16 * dt, 16)}")
A.extend(interleave(rd, mm))
for r in range(4):
    A(f"v_sub_f32 v{DC + r}, v51, v{DC + r}")
A("s_waitcnt lgkmcnt(0)")
for dt in range(4):
    for u in range(2):
        A(f"{M32} {v(ACC + 16 * dt, 16)}, {v(IDF + 4 * u, 4)}, {v(WA + 4 * (2 * dt + u), 4)}, {v(ACC + 16 * dt, 16)}")
    if dt >= 1:
        d = dt - 1
        for r in range(16):
            A(f"v_mul_f32 v{ACC + 16 * d + r}, s33, v{ACC + 16 * d + r}")
            if r % 4 == 3:
                A(f"ds_write_b128 v{P_PW}, {v(ACC + 16 * d + r - 3, 4)} offset:{(4 * d + r // 4) * 1024}")
A("s_waitcnt vmcnt(40)")
for ks in range(8):
    for j2 in range(2):
        A(f"ds_read_b64_tr_b16 {v(WB + 4 * ks + 2 * j2, 2)}, v{P_TRB} offset:{ks * 1024 + j2 * 256}")
d = 3
for r in range(16):
    A(f"v_mul_f32 v{ACC + 16 * d + r}, s33, v{ACC + 16 * d + r}")
    if r % 4 == 3:
        A(f"ds_write_b128 v{P_PW}, {v(ACC + 16 * d + r - 3, 4)} offset:{(4 * d + r // 4) * 1024}")
A("s_waitcnt lgkmcnt(4)")
for ks in range(8):
    A(f"{M32} {v(DC, 16)}, {a(A_TR + 4 * ks, 4)}, {v(WB + 4 * ks, 4)}, {v(DC, 16)}")
for r in range(4):
    A(f"v_mul_f32 v{DC + r}, s33, v{DC + r}")
for r in range(4):
    A(f"v_cvt_pk_bf16_f32 v{DC + 4 + r}, v{DC + r}, v{DC + r}")
for r in range(4):
    A(f"v_and_b32 v{DC + 4 + r}, 0xffff0000, v{DC + 4 + r}")
for r in range(4):
    A(f"v_sub_f32 v{DC + 4 + r}, v{DC + r}, v{DC + 4 + r}")
for r in range(4):
    A(f"v_cvt_pk_bf16_f32 v{DC + 4 + r}, v{DC + r}, v{DC + 4 + r}")
for r in range(4):
    A(f"ds_write_b32 v{P_CW}, v{DC + 4 + r} offset:{S_CPK + r * SSTR}")
A("s_waitcnt vmcnt(32) lgkmcnt(0)")
A("s_barrier")
stamp()

def c_reads(i):
    T, dt = i // 4, i % 4
    out = []
    for rq in range(4):
        out.append(f"ds_read_b128 {v(ACC + 16 * dt + 4 * rq, 4)}, v{P_PR} offset:{T * 16384 + (4 * dt + rq) * 1024}")
    for u in range(2):
        for j2 in range(2):
            out.append(f"ds_read_b64_tr_b16 {a(A_TR + 8 * dt + 4 * u + 2 * j2, 2)}, v{P_TRQ} offset:{T * 8192 + (2 * dt + u) * 1024 + j2 * 256}")
    return out


def c_mfma(i, u):
    dt = i % 4
    return f"{M32} {v(ACC + 16 * dt, 16)}, {a(A_F + 8 * dt + 4 * u, 4)}, {a(A_TR + 8 * dt + 4 * u, 4)}, {v(ACC + 16 * dt, 16)}"


def c_cvts(i):
    T, dt = i // 4, i % 4
    return [f"v_cvt_pk_bf16_f32 v{WE + 32 * T + 8 * dt + k}, v{ACC + 16 * dt + 2 * k}, v{ACC + 16 * dt + 2 * k + 1}" for k in range(8)]


A(f"ds_read_b128 {v(V_CPK, 4)}, v{P_CR} offset:{S_CPK}")
A.extend(c_reads(0))
A.extend(c_reads(1))
for i in range(-1, 16):
    rd = c_reads(i + 3) if i + 3 < 16 else []
    cv = c_cvts(i) if i >= 0 else []
    pairs = []
    for k in range(8):
        p = []
        if cv:
            p.append(cv[k])
        if rd:
            p.append(rd[k])
        pairs.append(p)
    if i + 1 < 16:
        A(f"s_waitcnt lgkmcnt({8 if i + 2 < 16 else 0})")
        A(c_mfma(i + 1, 0))
    for k in range(3):
        A.extend(pairs[k])
    if i + 1 < 16:
        A(c_mfma(i + 1, 1))
    for k in range(3, 8):
        A.extend(pairs[k])
stamp()

A("L_blocks:")
A("s_lshl_b32 s7, s8, 2")
A("s_add_u32 s7, s7, 4")
A("s_cmp_ge_u32 s6, s7")
A("s_cbranch_scc1 L_chunk_done")
A("L_blk:")
A("s_lshl_b32 s7, s6, 7")
A(f"v_add_u32 {v(V_MV)}, s7, {v(V_TMP)}")
for T in range(4):
    A(f"{M32} {v(ACC + 16 * T, 16)}, {v(V_CPK, 4)}, {v(ONES[T], 4)}, 0")
A(f"ds_read_b128 {v(V_MVAL, 4)}, {v(V_MV)}")
A("s_and_b32 s7, s6, 3")
A("s_cmp_lt_u32 s7, 2")
A("s_cbranch_scc1 L_s01")
A("s_cmp_eq_u32 s7, 2")
A("s_cbranch_scc1 L_s2")


def stub(jb, last=False):
    A(f"s_waitcnt vmcnt({24 - 8 * jb})")
    for q in range(8):
        A(f"ds_write_b128 {v(V_W)}, {a(A_ST + 32 * jb + 4 * q, 4)} offset:{q * 256}")
    if not last:
        A("s_branch L_body")


stub(3)
A("L_s2:")
stub(2)
A("L_s01:")
A("s_cmp_eq_u32 s7, 1")
A("s_cbranch_scc1 L_s1")
stub(0)
A("L_s1:")
stub(1, last=True)
A("L_body:")
if STAMP:
    A(f"s_memrealtime s[34:35]")
    A("s_waitcnt lgkmcnt(0)")
    A("s_and_b32 s7, s6, 3")
    for k in range(4):
        A(f"s_cmp_eq_u32 s7, {k}")
        A(f"s_cselect_b32 s{94 + k}, s34, s{94 + k}")


def G(T, ks):
    return f"{M32} {v(ACC + 16 * T, 16)}, {v(WE + 32 * T + 4 * ks, 4)}, {a(A_F + 4 * ks, 4)}, {v(ACC + 16 * T, 16)}"


def E(T):
    return [f"v_exp_f32 v{ACC + 16 * T + r}, v{ACC + 16 * T + r}" for r in range(16)]


def O(T):
    return f"{M32} {v(ACC + 16 * T, 16)}, {v(V_HALF, 4)}, {v(ONES[0], 4)}, {v(ACC + 16 * T, 16)}"


def RC(T):
    out = []
    b = ACC + 16 * T
    pend = []
    for k in range(8):
        out.append(f"v_rcp_f32 v{b + 2 * k}, v{b + 2 * k}")
        out.append(f"v_rcp_f32 v{b + 2 * k + 1}, v{b + 2 * k + 1}")
        if k >= 1:
            out.append(f"v_cvt_pk_bf16_f32 v{V_HP + k - 1}, v{b + 2 * k - 2}, v{b + 2 * k - 1}")
        if k == 6:
            out.append(W2(T, 0))
    out.append(f"v_cvt_pk_bf16_f32 v{V_HP + 7}, v{b + 14}, v{b + 15}")
    return out


def W2(T, u):
    q = 2 * T + u
    c = v(V_B2, 4) if q == 0 else v(V_SC, 4)
    return f"{M16} {v(V_SC, 4)}, {v(V_HP + 4 * u, 4)}, {a(A_W2 + 4 * q, 4)}, {c}"


for ks in range(8):
    A(f"ds_read_b128 {a(A_F + 4 * ks, 4)}, {v(V_F + ks)}")
trr = []
for dt in range(8):
    for h2 in range(2):
        trr.append(f"ds_read_b64_tr_b16 {a(A_TR + 4 * dt + 2 * h2, 2)}, {v(V_T + dt)} offset:{4096 * h2}")
for ks in range(8):
    A(f"s_waitcnt lgkmcnt(7)")
    A(G(0, ks))
    A(trr[ks])
A(G(1, 0))
A.extend(trr[8:12])
A(G(1, 1))
A.extend(trr[12:16])
A.extend(interleave([G(1, ks) for ks in range(2, 8)], E(0)))
A(G(2, 0))
A(O(0))
A.extend(interleave([G(2, ks) for ks in range(1, 4)], E(1)))
A(O(1))
A.extend(interleave([G(2, ks) for ks in range(4, 8)], RC(0)))
A(G(3, 0))
A(W2(0, 1))
A.extend(interleave([G(3, ks) for ks in range(1, 5)], RC(1)))
A.extend(interleave([G(3, ks) for ks in range(5, 8)] + [W2(1, 1)], E(2)))
A(O(2))
A.extend(E(3))
A(O(3))
A.extend(RC(2))
rc3 = RC(3)
A.extend(rc3[:2])
A(W2(2, 1))
A.extend(rc3[2:])
A(W2(3, 1))
A("s_waitcnt lgkmcnt(0)")
for r in range(4):
    A(f"v_mul_f32 v{V_SC + r}, v{V_SC + r}, v{V_MVAL + r}")
A(f"v_cvt_pk_bf16_f32 v{V_APK}, v{V_SC}, v{V_SC + 1}")
A(f"v_cvt_pk_bf16_f32 v{V_APK + 1}, v{V_SC + 2}, v{V_SC + 3}")
A(f"v_mov_b32_dpp v{V_APK + 2}, v{V_APK} quad_perm:[1,0,3,2] row_mask:0xf bank_mask:0xf")
A(f"v_mov_b32_dpp v{V_APK + 3}, v{V_APK + 1} quad_perm:[1,0,3,2] row_mask:0xf bank_mask:0xf")
A("s_add_u32 s6, s6, 1")
A("s_and_b32 s7, s6, 3")
for dt in range(8):
    A(f"{M16} {a(A_O + 4 * dt, 4)}, {v(V_APK, 4)}, {a(A_TR + 4 * dt, 4)}, {a(A_O + 4 * dt, 4)}")
A("s_cmp_lg_u32 s7, 0")
A("s_cbranch_scc1 L_blk")
A("L_chunk_done:")
A("s_add_u32 s8, s8, 1")
A("s_cmp_lt_u32 s8, 2")
A("s_cbranch_scc1 L_chunk")

A(f"v_lshlrev_b32 v66, 1, {L}")
for g in range(4):
    A(f"s_mov_b32 exec_lo, {hex(0xffff << (16 * g) if g < 2 else 0)}")
    A(f"s_mov_b32 exec_hi, {hex(0xffff << (16 * (g - 2)) if g >= 2 else 0)}")
    A(f"v_accvgpr_read_b32 v64, {a(A_O + 4 * g)}")
    A(f"v_accvgpr_read_b32 v65, {a(A_O + 4 * (g + 4))}")
A("s_mov_b64 exec, -1")
A("v_cvt_pk_bf16_f32 v64, v64, v65")
A(f"buffer_store_short v64, v66, {s(SRD_O, 4)}, 0 offen")
A(f"buffer_store_short_d16_hi v64, v66, {s(SRD_O, 4)}, 0 offen offset:128")
if STAMP:
    A("s_waitcnt vmcnt(0)")
    A(f"s_memrealtime s[34:35]")
    A("s_waitcnt lgkmcnt(0)")
    A(f"s_mov_b32 s98, s34")
    A("s_mov_b32 s99, s9")
    A("s_lshl_b32 s7, s5, 6")
    A("v_mov_b32 v66, s7")
    for k in range(14):
        A(f"v_mov_b32 v67, s{86 + k}")
        A(f"global_store_dword v66, v67, s[84:85] offset:{4 * k}")
A("L_end:")
A("s_endpgm")
A("L_codeend:")

npad = A.pad(verbose=bool(int(OPT.get("v", 0))))

ref = open("cdna_kernels/%s.s.ref" % NAME).read().split("\n")
head = [l for l in ref if l.startswith(";") and "@launch" not in l and "Override" not in l and "grid=ceil" not in l]
out = "\n".join(head) + "\n"
out += f"; @launch grid=(256,1,1) block=(256,1,1) lds={LDS_BYTES}\n"
out += '.amdgcn_target "amdgcn-amd-amdhsa--gfx950"\n.text\n'
out += f".globl {NAME}_kernel\n.p2align 8\n.type {NAME}_kernel,@function\n"
out += A.text()
out += f""".section .rodata,"a"
.p2align 6
.amdhsa_kernel {NAME}_kernel
  .amdhsa_next_free_vgpr 512
  .amdhsa_next_free_sgpr 102
  .amdhsa_accum_offset 256
  .amdhsa_group_segment_fixed_size 0
  .amdhsa_kernarg_size 80
  .amdhsa_user_sgpr_count 2
  .amdhsa_user_sgpr_kernarg_segment_ptr 1
  .amdhsa_system_sgpr_workgroup_id_x 1
.end_amdhsa_kernel
"""
open(sys.argv[1], "w").write(out)
print(f"wrote {sys.argv[1]}: {len(A.ins)} lines, {npad} pad states")
```

```python
import sys
import os

sys.path.insert(0, os.path.dirname(os.path.abspath(__file__)))
from asmlib import Asm, interleave

NAME = "standalone__sequential_behavior_din__recsys"
OPT = dict(a.split("=") if "=" in a else (a, "1") for a in sys.argv[2:])
STAMP = int(OPT.get("stamp", 0))
HIST_POL = OPT.get("hpol", "nt").replace("+", " ").replace("none", "")
MASK_POL = OPT.get("mpol", "none").replace("+", " ").replace("none", "")

PA = 0
QD = 65536
SB = 98304
SS = 131072
SSTR = 5120
S_ROW, S_MSK, S_T, S_W2, S_B1, S_CPK = 0, 1024, 2048, 3072, 4096, 4608
LDS_BYTES = SS + 4 * SSTR

V_LANE = 1
V_F = 2
V_T = 10
V_W = 18
V_MV = 19
V_CPK = 20
V_HALF = 24
ONES = {2: 26, 0: 28, 3: 30, 1: 32}
V_B2 = 36
V_SC = 40
V_MVAL = 44
V_APK = 48
V_HP = 52
V_TMP = 60
ACC = 64
WE = 128
A_ST = 0
A_F = 128
A_TR = 160
A_W2 = 192
A_O = 224


def v(i, n=1):
    return f"v{i}" if n == 1 else f"v[{i}:{i + n - 1}]"


def a(i, n=1):
    return f"a{i}" if n == 1 else f"a[{i}:{i + n - 1}]"


def s(i, n=1):
    return f"s{i}" if n == 1 else f"s[{i}:{i + n - 1}]"


M32 = "v_mfma_f32_32x32x16_bf16"
M16 = "v_mfma_f32_16x16x32_bf16"

A = Asm()
nstamp = [0]


def stamp():
    if not STAMP:
        return
    k = nstamp[0]
    nstamp[0] += 1
    A(f"s_memrealtime s[34:35]")
    A("s_waitcnt lgkmcnt(0)")
    A(f"s_mov_b32 s{86 + k}, s34")
    if k == 0:
        A("s_memtime s[34:35]")
        A("s_waitcnt lgkmcnt(0)")
        A("s_mov_b32 s100, s34")


SRD_H, SRD_M, SRD_T, SRD_W1, SRD_B1, SRD_W2, SRD_O = 36, 40, 44, 48, 52, 56, 60

A(f"{NAME}_kernel:")
A("s_cmp_ge_u32 s2, 256")
A("s_cbranch_scc1 L_end")
A("s_load_dwordx16 s[16:31], s[0:1], 0")
if STAMP:
    A("s_load_dwordx2 s[84:85], s[0:1], 72")
A("s_getpc_b64 s[12:13]")
A("L_pc:")
A(f"v_and_b32 {v(V_LANE)}, 63, v0")
A("v_lshrrev_b32 v60, 6, v0")
A(f"v_lshlrev_b32 v61, 7, v0")
A("v_readfirstlane_b32 s4, v60")
A("v_min_u32 v61, L_codeend-L_pc-4, v61")
A("global_load_dword v62, v61, s[12:13]")
stamp()
A("s_lshl_b32 s5, s2, 2")
A("s_add_u32 s5, s5, s4")
A(f"s_mul_i32 s10, s4, {SSTR}")
A(f"s_add_u32 s10, s10, {SS}")
A("s_lshl_b32 s11, s4, 13")
A(f"s_add_u32 s11, s11, {SB}")
A("s_mov_b32 s33, 0xbfb8aa3b")
for r, n in ((SRD_H, 51200), (SRD_M, 400), (SRD_T, 1024), (SRD_W1, 131072), (SRD_B1, 256), (SRD_W2, 256), (SRD_O, 256)):
    A(f"s_mov_b32 s{r + 2}, {n}")
    A(f"s_mov_b32 s{r + 3}, 0x20000")
L = v(V_LANE)
A(f"v_lshlrev_b32 v64, 3, {L}")
A(f"v_lshlrev_b32 v65, 4, {L}")
A(f"v_lshlrev_b32 v66, 2, {L}")
A(f"v_lshrrev_b32 v67, 2, {L}")
A(f"v_lshlrev_b32 v67, 8, v67")
A(f"v_and_b32 v68, 3, {L}")
A(f"v_lshl_add_u32 v67, v68, 4, v67")
A("s_lshl_b32 s7, s4, 6")
A("v_add_u32 v67, s7, v67")
A("v_mov_b32 v69, 0")
A("s_mul_i32 s14, s5, 400")
A("s_mul_i32 s15, s5, 51200")
A("s_waitcnt lgkmcnt(0)")
A(f"s_add_u32 s{SRD_M}, s20, s14")
A(f"s_addc_u32 s{SRD_M + 1}, s21, 0")
A(f"buffer_load_dwordx2 v[70:71], v64, {s(SRD_M, 4)}, 0 offen {MASK_POL}")
A("s_lshl_b32 s7, s2, 10")
A(f"s_add_u32 s{SRD_T}, s16, s7")
A(f"s_addc_u32 s{SRD_T + 1}, s17, 0")
A(f"s_add_u32 m0, s10, {S_T}")
A(f"s_mov_b32 s{SRD_W2}, s26")
A(f"buffer_load_dwordx4 v65, {s(SRD_T, 4)}, 0 offen lds")
A(f"s_mov_b32 s{SRD_W2 + 1}, s27")
A(f"s_add_u32 m0, s10, {S_W2}")
A(f"s_mov_b32 s{SRD_B1}, s24")
A(f"buffer_load_dwordx4 v65, {s(SRD_W2, 4)}, 0 offen lds")
A(f"s_mov_b32 s{SRD_B1 + 1}, s25")
A(f"s_add_u32 m0, s10, {S_B1}")
A(f"s_mov_b32 s{SRD_W1}, s22")
A(f"buffer_load_dword v66, {s(SRD_B1, 4)}, 0 offen lds")
A(f"s_mov_b32 s{SRD_W1 + 1}, s23")
A(f"global_load_ushort {v(V_B2)}, v69, s[28:29]")
A("s_lshl_b32 s14, s4, 14")
A("s_lshl_b32 s7, s4, 13")
for (row0, base_s, base_c) in ((256, "s14", PA + 8192), (0, "s14", PA), (128, "s7", SB), (384, "s7", QD)):
    for q in range(8):
        if q % 4 == 0:
            A(f"s_add_u32 m0, {base_s}, {base_c + q * 1024}")
        imm = (q % 4) * 1024
        so = row0 * 256 + q * 4096 - imm
        A(f"s_mov_b32 s3, {so}")
        A(f"buffer_load_dwordx4 v67, {s(SRD_W1, 4)}, s3 offen offset:{imm} lds")
A(f"s_add_u32 s{SRD_H}, s18, s15")
A(f"s_addc_u32 s{SRD_H + 1}, s19, 0")
A("s_lshl_b32 s7, s5, 8")
A(f"s_add_u32 s{SRD_O}, s30, s7")
A(f"s_addc_u32 s{SRD_O + 1}, s31, 0")

A("v_add_u32 v73, s10, v65")
A("v_mov_b32 v76, 0x40000000")
A("v_mov_b32 v77, 0x40000000")
A("v_mov_b32 v78, 0x40000000")
A("v_mov_b32 v79, 0x40000000")
A("v_mov_b32 v80, 0")
A("v_mov_b32 v81, 0")
A("v_mov_b32 v82, 0")
A("v_mov_b32 v83, 0")
A(f"ds_write_b128 v73, v[76:79] offset:{S_ROW}")
A(f"ds_write_b128 v73, v[80:83] offset:{S_MSK}")
A(f"v_lshlrev_b32 v84, 10, {L}")
A("v_add_u32 v85, 0x100, v84")
A("v_add_u32 v86, 0x200, v84")
A("v_add_u32 v87, 0x300, v84")
A(f"v_and_b32 v88, 15, {L}")
A(f"v_lshrrev_b32 v89, 4, {L}")
A(f"v_lshrrev_b32 v90, 5, {L}")
A(f"v_and_b32 v91, 31, {L}")
A("v_lshlrev_b32 v92, 11, v89")
A("v_lshl_add_u32 v92, v88, 4, v92")
A(f"v_add_u32 {v(V_W)}, s11, v92")
A("v_and_b32 v92, 7, v91")
A("v_bfe_u32 v93, v91, 3, 1")
A("v_lshl_or_b32 v92, v92, 1, v93")
A("v_xor_b32 v92, v92, v90")
A("v_lshlrev_b32 v92, 4, v92")
A("v_lshl_add_u32 v92, v91, 8, v92")
A(f"v_add_u32 {v(V_F)}, s11, v92")
for ks in range(1, 8):
    A(f"v_xor_b32 {v(V_F + ks)}, {ks << 5}, {v(V_F)}")
A(f"v_lshrrev_b32 v92, 2, {L}")
A("v_and_b32 v93, 7, v92")
A("v_lshrrev_b32 v94, 3, v92")
A("v_lshl_or_b32 v93, v93, 1, v94")
A(f"v_bfe_u32 v94, {L}, 1, 1")
A("v_xor_b32 v93, v93, v94")
A("v_lshlrev_b32 v93, 4, v93")
A("v_lshl_add_u32 v93, v92, 8, v93")
A(f"v_and_b32 v94, 1, {L}")
A("v_lshl_add_u32 v93, v94, 3, v93")
A(f"v_add_u32 {v(V_T)}, s11, v93")
for dt in range(1, 8):
    A(f"v_xor_b32 {v(V_T + dt)}, {dt << 5}, {v(V_T)}")
A("v_lshlrev_b32 v92, 6, v94")
A("v_lshl_add_u32 v92, v89, 4, v92")
A(f"v_add_u32 v92, {S_MSK}, v92")
A(f"v_add_u32 {v(V_TMP)}, s10, v92")
A("v_lshlrev_b32 v92, 5, v89")
A(f"v_add_u32 {v(V_TMP + 1)}, s10, v92")
A("v_and_b32 v92, 1, v89")
A("v_xor_b32 v92, v92, v88")
A(f"v_lshlrev_b32 {v(V_TMP + 3)}, 4, v92")
A(f"v_mov_b32 {v(V_HALF)}, 0x3f003f00")
for r in range(V_HALF + 1, V_HALF + 12):
    A(f"v_mov_b32 v{r}, 0")
A("v_cmp_gt_u32 vcc, 32, v1")
A("v_mov_b32 v92, 0x3f803f80")
A(f"v_cndmask_b32 v28, 0, v92, vcc")
A(f"v_cndmask_b32 v33, 0, v92, vcc")
for r in range(32):
    A(f"v_accvgpr_write_b32 {a(A_O + r)}, 0")
A("v_and_b32 v95, 0x13, v91")
A("v_bfe_u32 v92, v91, 2, 1")
A("v_lshl_or_b32 v95, v92, 3, v95")
A("v_bfe_u32 v93, v91, 3, 1")
A("v_lshl_or_b32 v95, v93, 2, v95")
A("v_lshrrev_b32 v93, 2, v91")
A("v_and_b32 v93, 6, v93")
A("v_bfe_u32 v96, v91, 1, 1")
A("v_or_b32 v93, v93, v96")
A("v_lshlrev_b32 v96, 4, v94")
A("v_mov_b32 v97, 0xffff")
A("v_lshlrev_b32 v96, v96, v97")
A("v_cmp_eq_u32 vcc, v92, v90")
A("v_cndmask_b32 v96, 0, v96, vcc")
for x in range(8):
    A(f"v_cmp_eq_u32 {s(64 + 2 * x, 2)}, {x}, v93")
for x in range(8):
    A(f"v_cndmask_b32 v{232 + x}, 0, v96, {s(64 + 2 * x, 2)}")
for x in range(8):
    A(f"v_and_b32 v{224 + x}, 0x3f803f80, v{232 + x}")
A("v_lshrrev_b32 v92, 2, v88")
A("v_lshl_add_u32 v92, v90, 3, v92")
A("v_lshlrev_b32 v92, 6, v92")
A("v_and_b32 v93, 1, v89")
A("v_lshl_add_u32 v92, v93, 5, v92")
A("v_lshl_add_u32 v92, v94, 4, v92")
A(f"v_bfe_u32 v93, {L}, 1, 1")
A("v_lshl_add_u32 v98, v93, 3, v92")
P_TRA, P_TRB, P_TRQ, P_PW, P_PR, P_TF, P_TV, P_B1, P_W2, P_CW, P_CR = range(40, 51)
A("s_lshl_b32 s7, s4, 14")
A(f"v_add_u32 v{P_TRA}, s7, v98")
A(f"v_add_u32 v{P_TRB}, s11, v98")
A(f"v_add_u32 v{P_TRQ}, {QD}, v98")
A(f"v_add_u32 v{P_PW}, s7, v65")
A(f"v_mov_b32 v{P_PR}, v65")
A("v_lshlrev_b32 v92, 8, v68")
A("v_lshl_add_u32 v92, v90, 4, v92")
A(f"v_add_u32 v{P_TF}, s10, v92")
A("s_lshl_b32 s7, s4, 8")
A("s_add_u32 s7, s7, s10")
A(f"v_lshl_add_u32 v{P_TV}, v95, 1, s7")
A("s_lshl_b32 s7, s4, 6")
A("s_add_u32 s7, s7, s10")
A(f"v_lshl_add_u32 v{P_B1}, v95, 1, s7")
A("v_and_b32 v92, 1, v89")
A("v_cmp_eq_u32 vcc, v92, v94")
A("v_lshlrev_b32 v92, 4, v90")
A("v_mov_b32 v93, 0x100")
A("v_cndmask_b32 v92, v93, v92, vcc")
A(f"v_add_u32 v{P_W2}, s10, v92")
A("s_lshl_b32 s7, s4, 2")
A(f"s_add_u32 s7, s7, {SS}")
A(f"v_lshl_add_u32 v{P_CW}, v91, 4, s7")
A(f"v_lshl_add_u32 v{P_CR}, v91, 4, s10")

A("s_waitcnt vmcnt(32)")
stamp()
A("v_lshlrev_b32 v100, 16, v70")
A("v_and_b32 v101, 0xffff0000, v70")
A("v_lshlrev_b32 v102, 16, v71")
A("v_and_b32 v103, 0xffff0000, v71")
for j in range(4):
    A(f"v_cmp_neq_f32 {s(64 + 2 * j, 2)}, 0, v{100 + j}")
A("v_mbcnt_lo_u32_b32 v104, s64, 0")
A("s_bcnt1_i32_b64 s12, s[64:65]")
A("v_mbcnt_hi_u32_b32 v104, s65, v104")
A("s_bcnt1_i32_b64 s13, s[66:67]")
A("v_mbcnt_lo_u32_b32 v104, s66, v104")
A("s_bcnt1_i32_b64 s14, s[68:69]")
A("v_mbcnt_hi_u32_b32 v104, s67, v104")
A("s_bcnt1_i32_b64 s15, s[70:71]")
A("v_mbcnt_lo_u32_b32 v104, s68, v104")
A("s_add_u32 s12, s12, s13")
A("v_mbcnt_hi_u32_b32 v104, s69, v104")
A("s_add_u32 s14, s14, s15")
A("v_mbcnt_lo_u32_b32 v104, s70, v104")
A("s_add_u32 s12, s12, s14")
A("v_mbcnt_hi_u32_b32 v104, s71, v104")
A("s_sub_u32 s12, 0x100, s12")
A("v_addc_co_u32 v105, s[72:73], v104, 0, s[64:65]")
A("s_lshr_b32 s9, s12, 5")
A("v_addc_co_u32 v106, s[72:73], v105, 0, s[66:67]")
A("s_lshl_b32 s12, s12, 2")
A("v_addc_co_u32 v107, s[72:73], v106, 0, s[68:69]")
A("s_add_u32 s12, s12, s10")
for j in range(4):
    A(f"v_lshl_add_u32 v{104 + j}, v{104 + j}, 2, s12")
for j in range(4):
    A(f"s_mov_b64 exec, {s(64 + 2 * j, 2)}")
    A(f"ds_write2st64_b32 v{104 + j}, v{84 + j}, v{100 + j} offset0:0 offset1:4")
A("s_mov_b64 exec, -1")
A("s_lshr_b32 s8, s9, 2")
A("s_min_u32 s8, s8, 1")
A("s_mov_b32 s32, 1")

A("L_chunk:")
A("s_lshl_b32 s7, s8, 9")
A(f"v_add_u32 v62, s7, {v(V_TMP + 1)}")
EN = 64
for jb in range(4):
    A(f"ds_read_b128 {v(EN + 8 * jb, 4)}, v62 offset:{S_ROW + 128 * jb}")
    A(f"ds_read_b128 {v(EN + 8 * jb + 4, 4)}, v62 offset:{S_ROW + 128 * jb + 16}")
for q in range(8):
    A(f"v_xor_b32 v{96 + q}, {q << 5}, {v(V_TMP + 3)}")
for jb in range(4):
    for q in range(8):
        if q % 4 == 0:
            A(f"s_waitcnt lgkmcnt({7 - 2 * jb - q // 4})")
        e = EN + 8 * jb + q
        A(f"v_add_u32 v{e}, v{e}, v{96 + q}")
        A(f"buffer_load_dwordx4 {a(A_ST + 32 * jb + 4 * q, 4)}, v{e}, {s(SRD_H, 4)}, 0 offen {HIST_POL}")
A("s_lshl_b32 s6, s8, 2")
A("s_max_u32 s6, s6, s9")
A("s_cmp_eq_u32 s32, 0")
A("s_cbranch_scc1 L_blocks")
A("s_mov_b32 s32, 0")
stamp()

for dt in range(4):
    A(f"ds_read_u16 v{104 + dt}, v{P_TV} offset:{S_T + 64 * dt}")
A(f"ds_read_u16 v108, v{P_B1} offset:{S_B1}")
for q in range(8):
    A(f"ds_read_b128 {a(A_W2 + 4 * q, 4)}, v{P_W2} offset:{S_W2 + 32 * q}")
A(f"v_lshlrev_b32 {v(V_B2)}, 16, {v(V_B2)}")
for r in range(1, 4):
    A(f"v_mov_b32 {v(V_B2 + r)}, {v(V_B2)}")
A("s_waitcnt lgkmcnt(8)")
for dt in range(4):
    A(f"v_lshlrev_b32 v{104 + dt}, 16, v{104 + dt}")
A("v_lshlrev_b32 v51, 16, v108")
for dt in range(4):
    A(f"v_mul_f32 v{104 + dt}, s33, v{104 + dt}")
for dt in range(4):
    A(f"v_cvt_pk_bf16_f32 v{104 + dt}, v{104 + dt}, v{104 + dt}")
for ks in range(8):
    A(f"ds_read_b128 {a(A_TR + 4 * ks, 4)}, v{P_TF} offset:{S_T + 32 * ks}")
for dt in range(4):
    for x in range(8):
        A(f"v_and_b32 v{112 + x}, v{104 + dt}, v{232 + x}")
    for x in range(8):
        A(f"v_accvgpr_write_b32 {a(A_F + 8 * dt + x)}, v{112 + x}")

WA, WC, WB, IDF, DC = 128, 160, 192, 224, 240
A("s_waitcnt vmcnt(56)")
for ks in range(8):
    for j2 in range(2):
        A(f"ds_read_b64_tr_b16 {v(WC + 4 * ks + 2 * j2, 2)}, v{P_TRA} offset:{8192 + ks * 1024 + j2 * 256}")
A("s_waitcnt lgkmcnt(0)")
for ks in range(8):
    A(f"{M32} {v(DC, 16)}, {a(A_TR + 4 * ks, 4)}, {v(WC + 4 * ks, 4)}, {'0' if ks == 0 else v(DC, 16)}")
A("s_waitcnt vmcnt(48)")
stamp()
rd = []
for ks in range(8):
    for j2 in range(2):
        rd.append(f"ds_read_b64_tr_b16 {v(WA + 4 * ks + 2 * j2, 2)}, v{P_TRA} offset:{ks * 1024 + j2 * 256}")
mm = []
for dt in range(4):
    for u in range(2):
        mm.append(f"{M32} {v(ACC + 16 * dt, 16)}, {v(IDF + 4 * u, 4)}, {v(WC + 4 * (2 * dt + u), 4)}, {'0' if u == 0 else v(ACC + 16 * dt, 16)}")
A.extend(interleave(rd, mm))
for r in range(4):
    A(f"v_sub_f32 v{DC + r}, v51, v{DC + r}")
A("s_waitcnt lgkmcnt(0)")
for dt in range(4):
    for u in range(2):
        A(f"{M32} {v(ACC + 16 * dt, 16)}, {v(IDF + 4 * u, 4)}, {v(WA + 4 * (2 * dt + u), 4)}, {v(ACC + 16 * dt, 16)}")
    if dt >= 1:
        d = dt - 1
        for r in range(16):
            A(f"v_mul_f32 v{ACC + 16 * d + r}, s33, v{ACC + 16 * d + r}")
            if r % 4 == 3:
                A(f"ds_write_b128 v{P_PW}, {v(ACC + 16 * d + r - 3, 4)} offset:{(4 * d + r // 4) * 1024}")
A("s_waitcnt vmcnt(40)")
for ks in range(8):
    for j2 in range(2):
        A(f"ds_read_b64_tr_b16 {v(WB + 4 * ks + 2 * j2, 2)}, v{P_TRB} offset:{ks * 1024 + j2 * 256}")
d = 3
for r in range(16):
    A(f"v_mul_f32 v{ACC + 16 * d + r}, s33, v{ACC + 16 * d + r}")
    if r % 4 == 3:
        A(f"ds_write_b128 v{P_PW}, {v(ACC + 16 * d + r - 3, 4)} offset:{(4 * d + r // 4) * 1024}")
A("s_waitcnt lgkmcnt(4)")
for ks in range(8):
    A(f"{M32} {v(DC, 16)}, {a(A_TR + 4 * ks, 4)}, {v(WB + 4 * ks, 4)}, {v(DC, 16)}")
for r in range(4):
    A(f"v_mul_f32 v{DC + r}, s33, v{DC + r}")
for r in range(4):
    A(f"v_cvt_pk_bf16_f32 v{DC + 4 + r}, v{DC + r}, v{DC + r}")
for r in range(4):
    A(f"v_and_b32 v{DC + 4 + r}, 0xffff0000, v{DC + 4 + r}")
for r in range(4):
    A(f"v_sub_f32 v{DC + 4 + r}, v{DC + r}, v{DC + 4 + r}")
for r in range(4):
    A(f"v_cvt_pk_bf16_f32 v{DC + 4 + r}, v{DC + r}, v{DC + 4 + r}")
for r in range(4):
    A(f"ds_write_b32 v{P_CW}, v{DC + 4 + r} offset:{S_CPK + r * SSTR}")
A("s_waitcnt vmcnt(32) lgkmcnt(0)")
A("s_barrier")
stamp()

def c_reads(i):
    T, dt = i // 4, i % 4
    out = []
    for rq in range(4):
        out.append(f"ds_read_b128 {v(ACC + 16 * dt + 4 * rq, 4)}, v{P_PR} offset:{T * 16384 + (4 * dt + rq) * 1024}")
    for u in range(2):
        for j2 in range(2):
            out.append(f"ds_read_b64_tr_b16 {a(A_TR + 8 * dt + 4 * u + 2 * j2, 2)}, v{P_TRQ} offset:{T * 8192 + (2 * dt + u) * 1024 + j2 * 256}")
    return out


def c_mfma(i, u):
    dt = i % 4
    return f"{M32} {v(ACC + 16 * dt, 16)}, {a(A_F + 8 * dt + 4 * u, 4)}, {a(A_TR + 8 * dt + 4 * u, 4)}, {v(ACC + 16 * dt, 16)}"


def c_cvts(i):
    T, dt = i // 4, i % 4
    return [f"v_cvt_pk_bf16_f32 v{WE + 32 * T + 8 * dt + k}, v{ACC + 16 * dt + 2 * k}, v{ACC + 16 * dt + 2 * k + 1}" for k in range(8)]


A(f"ds_read_b128 {v(V_CPK, 4)}, v{P_CR} offset:{S_CPK}")
A.extend(c_reads(0))
A.extend(c_reads(1))
for i in range(-1, 16):
    rd = c_reads(i + 3) if i + 3 < 16 else []
    cv = c_cvts(i) if i >= 0 else []
    pairs = []
    for k in range(8):
        p = []
        if cv:
            p.append(cv[k])
        if rd:
            p.append(rd[k])
        pairs.append(p)
    if i + 1 < 16:
        A(f"s_waitcnt lgkmcnt({8 if i + 2 < 16 else 0})")
        A(c_mfma(i + 1, 0))
    for k in range(3):
        A.extend(pairs[k])
    if i + 1 < 16:
        A(c_mfma(i + 1, 1))
    for k in range(3, 8):
        A.extend(pairs[k])
stamp()

A("L_blocks:")
A("s_lshl_b32 s7, s8, 2")
A("s_add_u32 s7, s7, 4")
A("s_cmp_ge_u32 s6, s7")
A("s_cbranch_scc1 L_chunk_done")
A("L_blk:")
A("s_lshl_b32 s7, s6, 7")
A(f"v_add_u32 {v(V_MV)}, s7, {v(V_TMP)}")
for T in range(4):
    A(f"{M32} {v(ACC + 16 * T, 16)}, {v(V_CPK, 4)}, {v(ONES[T], 4)}, 0")
A(f"ds_read_b128 {v(V_MVAL, 4)}, {v(V_MV)}")
A("s_and_b32 s7, s6, 3")
A("s_cmp_lt_u32 s7, 2")
A("s_cbranch_scc1 L_s01")
A("s_cmp_eq_u32 s7, 2")
A("s_cbranch_scc1 L_s2")


def stub(jb, last=False):
    A(f"s_waitcnt vmcnt({24 - 8 * jb})")
    for q in range(8):
        A(f"ds_write_b128 {v(V_W)}, {a(A_ST + 32 * jb + 4 * q, 4)} offset:{q * 256}")
    if not last:
        A("s_branch L_body")


stub(3)
A("L_s2:")
stub(2)
A("L_s01:")
A("s_cmp_eq_u32 s7, 1")
A("s_cbranch_scc1 L_s1")
stub(0)
A("L_s1:")
stub(1, last=True)
A("L_body:")
if STAMP:
    A(f"s_memrealtime s[34:35]")
    A("s_waitcnt lgkmcnt(0)")
    A("s_and_b32 s7, s6, 3")
    for k in range(4):
        A(f"s_cmp_eq_u32 s7, {k}")
        A(f"s_cselect_b32 s{94 + k}, s34, s{94 + k}")


def G(T, ks):
    return f"{M32} {v(ACC + 16 * T, 16)}, {v(WE + 32 * T + 4 * ks, 4)}, {a(A_F + 4 * ks, 4)}, {v(ACC + 16 * T, 16)}"


def E(T):
    return [f"v_exp_f32 v{ACC + 16 * T + r}, v{ACC + 16 * T + r}" for r in range(16)]


def O(T):
    return f"{M32} {v(ACC + 16 * T, 16)}, {v(V_HALF, 4)}, {v(ONES[0], 4)}, {v(ACC + 16 * T, 16)}"


def RC(T):
    out = []
    b = ACC + 16 * T
    pend = []
    for k in range(8):
        out.append(f"v_rcp_f32 v{b + 2 * k}, v{b + 2 * k}")
        out.append(f"v_rcp_f32 v{b + 2 * k + 1}, v{b + 2 * k + 1}")
        if k >= 1:
            out.append(f"v_cvt_pk_bf16_f32 v{V_HP + k - 1}, v{b + 2 * k - 2}, v{b + 2 * k - 1}")
        if k == 6:
            out.append(W2(T, 0))
    out.append(f"v_cvt_pk_bf16_f32 v{V_HP + 7}, v{b + 14}, v{b + 15}")
    return out


def W2(T, u):
    q = 2 * T + u
    c = v(V_B2, 4) if q == 0 else v(V_SC, 4)
    return f"{M16} {v(V_SC, 4)}, {v(V_HP + 4 * u, 4)}, {a(A_W2 + 4 * q, 4)}, {c}"


for ks in range(8):
    A(f"ds_read_b128 {a(A_F + 4 * ks, 4)}, {v(V_F + ks)}")
trr = []
for dt in range(8):
    for h2 in range(2):
        trr.append(f"ds_read_b64_tr_b16 {a(A_TR + 4 * dt + 2 * h2, 2)}, {v(V_T + dt)} offset:{4096 * h2}")
for ks in range(8):
    A(f"s_waitcnt lgkmcnt(7)")
    A(G(0, ks))
    A(trr[ks])
A(G(1, 0))
A.extend(trr[8:12])
A(G(1, 1))
A.extend(trr[12:16])
A.extend(interleave([G(1, ks) for ks in range(2, 8)], E(0)))
A(G(2, 0))
A(O(0))
A.extend(interleave([G(2, ks) for ks in range(1, 4)], E(1)))
A(O(1))
A.extend(interleave([G(2, ks) for ks in range(4, 8)], RC(0)))
A(G(3, 0))
A(W2(0, 1))
A.extend(interleave([G(3, ks) for ks in range(1, 5)], RC(1)))
A.extend(interleave([G(3, ks) for ks in range(5, 8)] + [W2(1, 1)], E(2)))
A(O(2))
A.extend(E(3))
A(O(3))
A.extend(RC(2))
rc3 = RC(3)
A.extend(rc3[:2])
A(W2(2, 1))
A.extend(rc3[2:])
A(W2(3, 1))
A("s_waitcnt lgkmcnt(0)")
for r in range(4):
    A(f"v_mul_f32 v{V_SC + r}, v{V_SC + r}, v{V_MVAL + r}")
A(f"v_cvt_pk_bf16_f32 v{V_APK}, v{V_SC}, v{V_SC + 1}")
A(f"v_cvt_pk_bf16_f32 v{V_APK + 1}, v{V_SC + 2}, v{V_SC + 3}")
A(f"v_mov_b32_dpp v{V_APK + 2}, v{V_APK} quad_perm:[1,0,3,2] row_mask:0xf bank_mask:0xf")
A(f"v_mov_b32_dpp v{V_APK + 3}, v{V_APK + 1} quad_perm:[1,0,3,2] row_mask:0xf bank_mask:0xf")
A("s_add_u32 s6, s6, 1")
A("s_and_b32 s7, s6, 3")
for dt in range(8):
    A(f"{M16} {a(A_O + 4 * dt, 4)}, {v(V_APK, 4)}, {a(A_TR + 4 * dt, 4)}, {a(A_O + 4 * dt, 4)}")
A("s_cmp_lg_u32 s7, 0")
A("s_cbranch_scc1 L_blk")
A("L_chunk_done:")
A("s_add_u32 s8, s8, 1")
A("s_cmp_lt_u32 s8, 2")
A("s_cbranch_scc1 L_chunk")

A(f"v_lshlrev_b32 v66, 1, {L}")
for g in range(4):
    A(f"s_mov_b32 exec_lo, {hex(0xffff << (16 * g) if g < 2 else 0)}")
    A(f"s_mov_b32 exec_hi, {hex(0xffff << (16 * (g - 2)) if g >= 2 else 0)}")
    A(f"v_accvgpr_read_b32 v64, {a(A_O + 4 * g)}")
    A(f"v_accvgpr_read_b32 v65, {a(A_O + 4 * (g + 4))}")
A("s_mov_b64 exec, -1")
A("v_cvt_pk_bf16_f32 v64, v64, v65")
A(f"buffer_store_short v64, v66, {s(SRD_O, 4)}, 0 offen")
A(f"buffer_store_short_d16_hi v64, v66, {s(SRD_O, 4)}, 0 offen offset:128")
if STAMP:
    A("s_waitcnt vmcnt(0)")
    A(f"s_memrealtime s[34:35]")
    A("s_waitcnt lgkmcnt(0)")
    A(f"s_mov_b32 s98, s34")
    A("s_memtime s[34:35]")
    A("s_waitcnt lgkmcnt(0)")
    A("s_sub_u32 s99, s34, s100")
    A("s_lshl_b32 s7, s5, 6")
    A("v_mov_b32 v66, s7")
    for k in range(14):
        A(f"v_mov_b32 v67, s{86 + k}")
        A(f"global_store_dword v66, v67, s[84:85] offset:{4 * k}")
A("L_end:")
A("s_endpgm")
A("L_codeend:")

npad = A.pad(verbose=bool(int(OPT.get("v", 0))))

ref = open("cdna_kernels/%s.s.ref" % NAME).read().split("\n")
head = [l for l in ref if l.startswith(";") and "@launch" not in l and "Override" not in l and "grid=ceil" not in l]
out = "\n".join(head) + "\n"
out += f"; @launch grid=(256,1,1) block=(256,1,1) lds={LDS_BYTES}\n"
out += '.amdgcn_target "amdgcn-amd-amdhsa--gfx950"\n.text\n'
out += f".globl {NAME}_kernel\n.p2align 8\n.type {NAME}_kernel,@function\n"
out += A.text()
out += f""".section .rodata,"a"
.p2align 6
.amdhsa_kernel {NAME}_kernel
  .amdhsa_next_free_vgpr 512
  .amdhsa_next_free_sgpr 102
  .amdhsa_accum_offset 256
  .amdhsa_group_segment_fixed_size 0
  .amdhsa_kernarg_size 80
  .amdhsa_user_sgpr_count 2
  .amdhsa_user_sgpr_kernarg_segment_ptr 1
  .amdhsa_system_sgpr_workgroup_id_x 1
.end_amdhsa_kernel
"""
open(sys.argv[1], "w").write(out)
print(f"wrote {sys.argv[1]}: {len(A.ins)} lines, {npad} pad states")
```

```python
import sys
import os

sys.path.insert(0, os.path.dirname(os.path.abspath(__file__)))
from asmlib import Asm, interleave

NAME = "standalone__sequential_behavior_din__recsys"
OPT = dict(a.split("=") if "=" in a else (a, "1") for a in sys.argv[2:])
STAMP = int(OPT.get("stamp", 0))
HIST_POL = OPT.get("hpol", "nt").replace("+", " ").replace("none", "")
MASK_POL = OPT.get("mpol", "none").replace("+", " ").replace("none", "")

PA = 0
QD = 65536
SB = 98304
SS = 131072
SSTR = 5120
S_ROW, S_MSK, S_T, S_W2, S_B1, S_CPK = 0, 1024, 2048, 3072, 4096, 4608
LDS_BYTES = SS + 4 * SSTR

V_LANE = 1
V_F = 2
V_T = 10
V_W = 18
V_MV = 19
V_CPK = 20
V_HALF = 24
ONES = {2: 26, 0: 28, 3: 30, 1: 32}
V_B2 = 36
V_SC = 40
V_MVAL = 44
V_APK = 48
V_HP = 52
V_TMP = 60
ACC = 64
WE = 128
A_ST = 0
A_F = 128
A_TR = 160
A_W2 = 192
A_O = 224


def v(i, n=1):
    return f"v{i}" if n == 1 else f"v[{i}:{i + n - 1}]"


def a(i, n=1):
    return f"a{i}" if n == 1 else f"a[{i}:{i + n - 1}]"


def s(i, n=1):
    return f"s{i}" if n == 1 else f"s[{i}:{i + n - 1}]"


M32 = "v_mfma_f32_32x32x16_bf16"
M16 = "v_mfma_f32_16x16x32_bf16"

A = Asm()
nstamp = [0]


def stamp():
    if not STAMP:
        return
    k = nstamp[0]
    nstamp[0] += 1
    A(f"s_memrealtime s[34:35]")
    A("s_waitcnt lgkmcnt(0)")
    A(f"s_mov_b32 s{86 + k}, s34")
    if k == 0:
        A("s_memtime s[34:35]")
        A("s_waitcnt lgkmcnt(0)")
        A("s_mov_b32 s100, s34")


SRD_H, SRD_M, SRD_T, SRD_W1, SRD_B1, SRD_W2, SRD_O = 36, 40, 44, 48, 52, 56, 60

A(f"{NAME}_kernel:")
A("s_cmp_ge_u32 s2, 256")
A("s_cbranch_scc1 L_end")
A("s_load_dwordx16 s[16:31], s[0:1], 0")
if STAMP:
    A("s_load_dwordx2 s[84:85], s[0:1], 72")
A("s_getpc_b64 s[12:13]")
A("L_pc:")
A(f"v_and_b32 {v(V_LANE)}, 63, v0")
A("v_lshrrev_b32 v60, 6, v0")
A(f"v_lshlrev_b32 v61, 7, v0")
A("v_readfirstlane_b32 s4, v60")
A("v_min_u32 v61, L_codeend-L_pc-4, v61")
A("global_load_dword v62, v61, s[12:13]")
stamp()
A("s_lshl_b32 s5, s2, 2")
A("s_add_u32 s5, s5, s4")
A(f"s_mul_i32 s10, s4, {SSTR}")
A(f"s_add_u32 s10, s10, {SS}")
A("s_lshl_b32 s11, s4, 13")
A(f"s_add_u32 s11, s11, {SB}")
A("s_mov_b32 s33, 0xbfb8aa3b")
for r, n in ((SRD_H, 51200), (SRD_M, 400), (SRD_T, 1024), (SRD_W1, 131072), (SRD_B1, 256), (SRD_W2, 256), (SRD_O, 256)):
    A(f"s_mov_b32 s{r + 2}, {n}")
    A(f"s_mov_b32 s{r + 3}, 0x20000")
L = v(V_LANE)
A(f"v_lshlrev_b32 v64, 3, {L}")
A(f"v_lshlrev_b32 v65, 4, {L}")
A(f"v_lshlrev_b32 v66, 2, {L}")
A(f"v_lshrrev_b32 v67, 2, {L}")
A(f"v_lshlrev_b32 v67, 8, v67")
A(f"v_and_b32 v68, 3, {L}")
A(f"v_lshl_add_u32 v67, v68, 4, v67")
A("s_lshl_b32 s7, s4, 6")
A("v_add_u32 v67, s7, v67")
A("v_mov_b32 v69, 0")
A("s_mul_i32 s14, s5, 400")
A("s_mul_i32 s15, s5, 51200")
A("s_waitcnt lgkmcnt(0)")
A(f"s_add_u32 s{SRD_M}, s20, s14")
A(f"s_addc_u32 s{SRD_M + 1}, s21, 0")
A(f"buffer_load_dwordx2 v[70:71], v64, {s(SRD_M, 4)}, 0 offen {MASK_POL}")
A("s_lshl_b32 s7, s2, 10")
A(f"s_add_u32 s{SRD_T}, s16, s7")
A(f"s_addc_u32 s{SRD_T + 1}, s17, 0")
A(f"s_add_u32 m0, s10, {S_T}")
A(f"s_mov_b32 s{SRD_W2}, s26")
A(f"buffer_load_dwordx4 v65, {s(SRD_T, 4)}, 0 offen lds")
A(f"s_mov_b32 s{SRD_W2 + 1}, s27")
A(f"s_add_u32 m0, s10, {S_W2}")
A(f"s_mov_b32 s{SRD_B1}, s24")
A(f"buffer_load_dwordx4 v65, {s(SRD_W2, 4)}, 0 offen lds")
A(f"s_mov_b32 s{SRD_B1 + 1}, s25")
A(f"s_add_u32 m0, s10, {S_B1}")
A(f"s_mov_b32 s{SRD_W1}, s22")
A(f"buffer_load_dword v66, {s(SRD_B1, 4)}, 0 offen lds")
A(f"s_mov_b32 s{SRD_W1 + 1}, s23")
A(f"global_load_ushort {v(V_B2)}, v69, s[28:29]")
A("s_lshl_b32 s14, s4, 14")
A("s_lshl_b32 s7, s4, 13")
for (row0, base_s, base_c) in ((256, "s14", PA + 8192), (0, "s14", PA), (128, "s7", SB), (384, "s7", QD)):
    for q in range(8):
        if q % 4 == 0:
            A(f"s_add_u32 m0, {base_s}, {base_c + q * 1024}")
        imm = (q % 4) * 1024
        so = row0 * 256 + q * 4096 - imm
        A(f"s_mov_b32 s3, {so}")
        A(f"buffer_load_dwordx4 v67, {s(SRD_W1, 4)}, s3 offen offset:{imm} lds")
A(f"s_add_u32 s{SRD_H}, s18, s15")
A(f"s_addc_u32 s{SRD_H + 1}, s19, 0")
A("s_lshl_b32 s7, s5, 8")
A(f"s_add_u32 s{SRD_O}, s30, s7")
A(f"s_addc_u32 s{SRD_O + 1}, s31, 0")

A("v_add_u32 v73, s10, v65")
A("v_mov_b32 v76, 0x40000000")
A("v_mov_b32 v77, 0x40000000")
A("v_mov_b32 v78, 0x40000000")
A("v_mov_b32 v79, 0x40000000")
A("v_mov_b32 v80, 0")
A("v_mov_b32 v81, 0")
A("v_mov_b32 v82, 0")
A("v_mov_b32 v83, 0")
A(f"ds_write_b128 v73, v[76:79] offset:{S_ROW}")
A(f"ds_write_b128 v73, v[80:83] offset:{S_MSK}")
A(f"v_lshlrev_b32 v84, 10, {L}")
A("v_add_u32 v85, 0x100, v84")
A("v_add_u32 v86, 0x200, v84")
A("v_add_u32 v87, 0x300, v84")
A(f"v_and_b32 v88, 15, {L}")
A(f"v_lshrrev_b32 v89, 4, {L}")
A(f"v_lshrrev_b32 v90, 5, {L}")
A(f"v_and_b32 v91, 31, {L}")
A("v_lshlrev_b32 v92, 11, v89")
A("v_lshl_add_u32 v92, v88, 4, v92")
A(f"v_add_u32 {v(V_W)}, s11, v92")
A("v_and_b32 v92, 7, v91")
A("v_bfe_u32 v93, v91, 3, 1")
A("v_lshl_or_b32 v92, v92, 1, v93")
A("v_xor_b32 v92, v92, v90")
A("v_lshlrev_b32 v92, 4, v92")
A("v_lshl_add_u32 v92, v91, 8, v92")
A(f"v_add_u32 {v(V_F)}, s11, v92")
for ks in range(1, 8):
    A(f"v_xor_b32 {v(V_F + ks)}, {ks << 5}, {v(V_F)}")
A(f"v_lshrrev_b32 v92, 2, {L}")
A("v_and_b32 v93, 7, v92")
A("v_lshrrev_b32 v94, 3, v92")
A("v_lshl_or_b32 v93, v93, 1, v94")
A(f"v_bfe_u32 v94, {L}, 1, 1")
A("v_xor_b32 v93, v93, v94")
A("v_lshlrev_b32 v93, 4, v93")
A("v_lshl_add_u32 v93, v92, 8, v93")
A(f"v_and_b32 v94, 1, {L}")
A("v_lshl_add_u32 v93, v94, 3, v93")
A(f"v_add_u32 {v(V_T)}, s11, v93")
for dt in range(1, 8):
    A(f"v_xor_b32 {v(V_T + dt)}, {dt << 5}, {v(V_T)}")
A("v_lshlrev_b32 v92, 6, v94")
A("v_lshl_add_u32 v92, v89, 4, v92")
A(f"v_add_u32 v92, {S_MSK}, v92")
A(f"v_add_u32 {v(V_TMP)}, s10, v92")
A("v_lshlrev_b32 v92, 5, v89")
A(f"v_add_u32 {v(V_TMP + 1)}, s10, v92")
A("v_and_b32 v92, 1, v89")
A("v_xor_b32 v92, v92, v88")
A(f"v_lshlrev_b32 {v(V_TMP + 3)}, 4, v92")
A(f"v_mov_b32 {v(V_HALF)}, 0x3f003f00")
for r in range(V_HALF + 1, V_HALF + 12):
    A(f"v_mov_b32 v{r}, 0")
A("v_cmp_gt_u32 vcc, 32, v1")
A("v_mov_b32 v92, 0x3f803f80")
A(f"v_cndmask_b32 v28, 0, v92, vcc")
A(f"v_cndmask_b32 v33, 0, v92, vcc")
for r in range(32):
    A(f"v_accvgpr_write_b32 {a(A_O + r)}, 0")
A("v_and_b32 v95, 0x13, v91")
A("v_bfe_u32 v92, v91, 2, 1")
A("v_lshl_or_b32 v95, v92, 3, v95")
A("v_bfe_u32 v93, v91, 3, 1")
A("v_lshl_or_b32 v95, v93, 2, v95")
A("v_lshrrev_b32 v93, 2, v91")
A("v_and_b32 v93, 6, v93")
A("v_bfe_u32 v96, v91, 1, 1")
A("v_or_b32 v93, v93, v96")
A("v_lshlrev_b32 v96, 4, v94")
A("v_mov_b32 v97, 0xffff")
A("v_lshlrev_b32 v96, v96, v97")
A("v_cmp_eq_u32 vcc, v92, v90")
A("v_cndmask_b32 v96, 0, v96, vcc")
for x in range(8):
    A(f"v_cmp_eq_u32 {s(64 + 2 * x, 2)}, {x}, v93")
for x in range(8):
    A(f"v_cndmask_b32 v{232 + x}, 0, v96, {s(64 + 2 * x, 2)}")
for x in range(8):
    A(f"v_and_b32 v{224 + x}, 0x3f803f80, v{232 + x}")
A("v_lshrrev_b32 v92, 2, v88")
A("v_lshl_add_u32 v92, v90, 3, v92")
A("v_lshlrev_b32 v92, 6, v92")
A("v_and_b32 v93, 1, v89")
A("v_lshl_add_u32 v92, v93, 5, v92")
A("v_lshl_add_u32 v92, v94, 4, v92")
A(f"v_bfe_u32 v93, {L}, 1, 1")
A("v_lshl_add_u32 v98, v93, 3, v92")
P_TRA, P_TRB, P_TRQ, P_PW, P_PR, P_TF, P_TV, P_B1, P_W2, P_CW, P_CR = range(40, 51)
A("s_lshl_b32 s7, s4, 14")
A(f"v_add_u32 v{P_TRA}, s7, v98")
A(f"v_add_u32 v{P_TRB}, s11, v98")
A(f"v_add_u32 v{P_TRQ}, {QD}, v98")
A(f"v_add_u32 v{P_PW}, s7, v65")
A(f"v_mov_b32 v{P_PR}, v65")
A("v_lshlrev_b32 v92, 8, v68")
A("v_lshl_add_u32 v92, v90, 4, v92")
A(f"v_add_u32 v{P_TF}, s10, v92")
A("s_lshl_b32 s7, s4, 8")
A("s_add_u32 s7, s7, s10")
A(f"v_lshl_add_u32 v{P_TV}, v95, 1, s7")
A("s_lshl_b32 s7, s4, 6")
A("s_add_u32 s7, s7, s10")
A(f"v_lshl_add_u32 v{P_B1}, v95, 1, s7")
A("v_and_b32 v92, 1, v89")
A("v_cmp_eq_u32 vcc, v92, v94")
A("v_lshlrev_b32 v92, 4, v90")
A("v_mov_b32 v93, 0x100")
A("v_cndmask_b32 v92, v93, v92, vcc")
A(f"v_add_u32 v{P_W2}, s10, v92")
A("s_lshl_b32 s7, s4, 2")
A(f"s_add_u32 s7, s7, {SS}")
A(f"v_lshl_add_u32 v{P_CW}, v91, 4, s7")
A(f"v_lshl_add_u32 v{P_CR}, v91, 4, s10")

A("s_waitcnt vmcnt(32)")
stamp()
A("v_lshlrev_b32 v100, 16, v70")
A("v_and_b32 v101, 0xffff0000, v70")
A("v_lshlrev_b32 v102, 16, v71")
A("v_and_b32 v103, 0xffff0000, v71")
for j in range(4):
    A(f"v_cmp_neq_f32 {s(64 + 2 * j, 2)}, 0, v{100 + j}")
A("v_mbcnt_lo_u32_b32 v104, s64, 0")
A("s_bcnt1_i32_b64 s12, s[64:65]")
A("v_mbcnt_hi_u32_b32 v104, s65, v104")
A("s_bcnt1_i32_b64 s13, s[66:67]")
A("v_mbcnt_lo_u32_b32 v104, s66, v104")
A("s_bcnt1_i32_b64 s14, s[68:69]")
A("v_mbcnt_hi_u32_b32 v104, s67, v104")
A("s_bcnt1_i32_b64 s15, s[70:71]")
A("v_mbcnt_lo_u32_b32 v104, s68, v104")
A("s_add_u32 s12, s12, s13")
A("v_mbcnt_hi_u32_b32 v104, s69, v104")
A("s_add_u32 s14, s14, s15")
A("v_mbcnt_lo_u32_b32 v104, s70, v104")
A("s_add_u32 s12, s12, s14")
A("v_mbcnt_hi_u32_b32 v104, s71, v104")
A("s_sub_u32 s12, 0x100, s12")
A("v_addc_co_u32 v105, s[72:73], v104, 0, s[64:65]")
A("s_lshr_b32 s9, s12, 5")
A("v_addc_co_u32 v106, s[72:73], v105, 0, s[66:67]")
A("s_lshl_b32 s12, s12, 2")
A("v_addc_co_u32 v107, s[72:73], v106, 0, s[68:69]")
A("s_add_u32 s12, s12, s10")
for j in range(4):
    A(f"v_lshl_add_u32 v{104 + j}, v{104 + j}, 2, s12")
for j in range(4):
    A(f"s_mov_b64 exec, {s(64 + 2 * j, 2)}")
    A(f"ds_write2st64_b32 v{104 + j}, v{84 + j}, v{100 + j} offset0:0 offset1:4")
A("s_mov_b64 exec, -1")
A("s_lshr_b32 s8, s9, 2")
A("s_min_u32 s8, s8, 1")
A("s_mov_b32 s32, 1")

A("L_chunk:")
A("s_lshl_b32 s7, s8, 9")
A(f"v_add_u32 v62, s7, {v(V_TMP + 1)}")
EN = 64
for jb in range(4):
    A(f"ds_read_b128 {v(EN + 8 * jb, 4)}, v62 offset:{S_ROW + 128 * jb}")
    A(f"ds_read_b128 {v(EN + 8 * jb + 4, 4)}, v62 offset:{S_ROW + 128 * jb + 16}")
for q in range(8):
    A(f"v_xor_b32 v{96 + q}, {q << 5}, {v(V_TMP + 3)}")
for jb in range(4):
    for q in range(8):
        if q % 4 == 0:
            A(f"s_waitcnt lgkmcnt({7 - 2 * jb - q // 4})")
        e = EN + 8 * jb + q
        A(f"v_add_u32 v{e}, v{e}, v{96 + q}")
        A(f"buffer_load_dwordx4 {a(A_ST + 32 * jb + 4 * q, 4)}, v{e}, {s(SRD_H, 4)}, 0 offen {HIST_POL}")
A("s_lshl_b32 s6, s8, 2")
A("s_max_u32 s6, s6, s9")
A("s_cmp_eq_u32 s32, 0")
A("s_cbranch_scc1 L_blocks")
A("s_mov_b32 s32, 0")
stamp()

for dt in range(4):
    A(f"ds_read_u16 v{104 + dt}, v{P_TV} offset:{S_T + 64 * dt}")
A(f"ds_read_u16 v108, v{P_B1} offset:{S_B1}")
for q in range(8):
    A(f"ds_read_b128 {a(A_W2 + 4 * q, 4)}, v{P_W2} offset:{S_W2 + 32 * q}")
A(f"v_lshlrev_b32 {v(V_B2)}, 16, {v(V_B2)}")
for r in range(1, 4):
    A(f"v_mov_b32 {v(V_B2 + r)}, {v(V_B2)}")
A("s_waitcnt lgkmcnt(8)")
for dt in range(4):
    A(f"v_lshlrev_b32 v{104 + dt}, 16, v{104 + dt}")
A("v_lshlrev_b32 v51, 16, v108")
for dt in range(4):
    A(f"v_mul_f32 v{104 + dt}, s33, v{104 + dt}")
for dt in range(4):
    A(f"v_cvt_pk_bf16_f32 v{104 + dt}, v{104 + dt}, v{104 + dt}")
for ks in range(8):
    A(f"ds_read_b128 {a(A_TR + 4 * ks, 4)}, v{P_TF} offset:{S_T + 32 * ks}")
for dt in range(4):
    for x in range(8):
        A(f"v_and_b32 v{112 + x}, v{104 + dt}, v{232 + x}")
    for x in range(8):
        A(f"v_accvgpr_write_b32 {a(A_F + 8 * dt + x)}, v{112 + x}")

WA, WC, WB, IDF, DC = 128, 160, 192, 224, 240
A("s_waitcnt vmcnt(56)")
for ks in range(8):
    for j2 in range(2):
        A(f"ds_read_b64_tr_b16 {v(WC + 4 * ks + 2 * j2, 2)}, v{P_TRA} offset:{8192 + ks * 1024 + j2 * 256}")
A("s_waitcnt lgkmcnt(0)")
for ks in range(8):
    A(f"{M32} {v(DC, 16)}, {a(A_TR + 4 * ks, 4)}, {v(WC + 4 * ks, 4)}, {'0' if ks == 0 else v(DC, 16)}")
A("s_waitcnt vmcnt(48)")
stamp()
rd = []
for ks in range(8):
    for j2 in range(2):
        rd.append(f"ds_read_b64_tr_b16 {v(WA + 4 * ks + 2 * j2, 2)}, v{P_TRA} offset:{ks * 1024 + j2 * 256}")
mm = []
for dt in range(4):
    for u in range(2):
        mm.append(f"{M32} {v(ACC + 16 * dt, 16)}, {v(IDF + 4 * u, 4)}, {v(WC + 4 * (2 * dt + u), 4)}, {'0' if u == 0 else v(ACC + 16 * dt, 16)}")
A.extend(interleave(rd, mm))
for r in range(4):
    A(f"v_sub_f32 v{DC + r}, v51, v{DC + r}")
A("s_waitcnt lgkmcnt(0)")
for dt in range(4):
    for u in range(2):
        A(f"{M32} {v(ACC + 16 * dt, 16)}, {v(IDF + 4 * u, 4)}, {v(WA + 4 * (2 * dt + u), 4)}, {v(ACC + 16 * dt, 16)}")
    if dt >= 1:
        d = dt - 1
        for r in range(16):
            A(f"v_mul_f32 v{ACC + 16 * d + r}, s33, v{ACC + 16 * d + r}")
            if r % 4 == 3:
                A(f"ds_write_b128 v{P_PW}, {v(ACC + 16 * d + r - 3, 4)} offset:{(4 * d + r // 4) * 1024}")
A("s_waitcnt vmcnt(40)")
for ks in range(8):
    for j2 in range(2):
        A(f"ds_read_b64_tr_b16 {v(WB + 4 * ks + 2 * j2, 2)}, v{P_TRB} offset:{ks * 1024 + j2 * 256}")
d = 3
for r in range(16):
    A(f"v_mul_f32 v{ACC + 16 * d + r}, s33, v{ACC + 16 * d + r}")
    if r % 4 == 3:
        A(f"ds_write_b128 v{P_PW}, {v(ACC + 16 * d + r - 3, 4)} offset:{(4 * d + r // 4) * 1024}")
A("s_waitcnt lgkmcnt(4)")
for ks in range(8):
    A(f"{M32} {v(DC, 16)}, {a(A_TR + 4 * ks, 4)}, {v(WB + 4 * ks, 4)}, {v(DC, 16)}")
for r in range(4):
    A(f"v_mul_f32 v{DC + r}, s33, v{DC + r}")
for r in range(4):
    A(f"v_cvt_pk_bf16_f32 v{DC + 4 + r}, v{DC + r}, v{DC + r}")
for r in range(4):
    A(f"v_and_b32 v{DC + 4 + r}, 0xffff0000, v{DC + 4 + r}")
for r in range(4):
    A(f"v_sub_f32 v{DC + 4 + r}, v{DC + r}, v{DC + 4 + r}")
for r in range(4):
    A(f"v_cvt_pk_bf16_f32 v{DC + 4 + r}, v{DC + r}, v{DC + 4 + r}")
for r in range(4):
    A(f"ds_write_b32 v{P_CW}, v{DC + 4 + r} offset:{S_CPK + r * SSTR}")
A("s_waitcnt vmcnt(32) lgkmcnt(0)")
A("s_barrier")
stamp()

def c_reads(i):
    T, dt = i // 4, i % 4
    out = []
    for rq in range(4):
        out.append(f"ds_read_b128 {v(ACC + 16 * dt + 4 * rq, 4)}, v{P_PR} offset:{T * 16384 + (4 * dt + rq) * 1024}")
    for u in range(2):
        for j2 in range(2):
            out.append(f"ds_read_b64_tr_b16 {a(A_TR + 8 * dt + 4 * u + 2 * j2, 2)}, v{P_TRQ} offset:{T * 8192 + (2 * dt + u) * 1024 + j2 * 256}")
    return out


def c_mfma(i, u):
    dt = i % 4
    return f"{M32} {v(ACC + 16 * dt, 16)}, {a(A_F + 8 * dt + 4 * u, 4)}, {a(A_TR + 8 * dt + 4 * u, 4)}, {v(ACC + 16 * dt, 16)}"


def c_cvts(i):
    T, dt = i // 4, i % 4
    return [f"v_cvt_pk_bf16_f32 v{WE + 32 * T + 8 * dt + k}, v{ACC + 16 * dt + 2 * k}, v{ACC + 16 * dt + 2 * k + 1}" for k in range(8)]


A(f"ds_read_b128 {v(V_CPK, 4)}, v{P_CR} offset:{S_CPK}")
A.extend(c_reads(0))
A.extend(c_reads(1))
for i in range(-1, 16):
    rd = c_reads(i + 3) if i + 3 < 16 else []
    cv = c_cvts(i) if i >= 0 else []
    pairs = []
    for k in range(8):
        p = []
        if cv:
            p.append(cv[k])
        if rd:
            p.append(rd[k])
        pairs.append(p)
    if i + 1 < 16:
        A(f"s_waitcnt lgkmcnt({8 if i + 2 < 16 else 0})")
        A(c_mfma(i + 1, 0))
    for k in range(3):
        A.extend(pairs[k])
    if i + 1 < 16:
        A(c_mfma(i + 1, 1))
    for k in range(3, 8):
        A.extend(pairs[k])
stamp()

A("L_blocks:")
A("s_lshl_b32 s7, s8, 2")
A("s_add_u32 s7, s7, 4")
A("s_cmp_ge_u32 s6, s7")
A("s_cbranch_scc1 L_chunk_done")
A("L_blk:")
A("s_lshl_b32 s7, s6, 7")
A(f"v_add_u32 {v(V_MV)}, s7, {v(V_TMP)}")
for T in range(4):
    A(f"{M32} {v(ACC + 16 * T, 16)}, {v(V_CPK, 4)}, {v(ONES[T], 4)}, 0")
A(f"ds_read_b128 {v(V_MVAL, 4)}, {v(V_MV)}")
A("s_and_b32 s7, s6, 3")
A("s_cmp_lt_u32 s7, 2")
A("s_cbranch_scc1 L_s01")
A("s_cmp_eq_u32 s7, 2")
A("s_cbranch_scc1 L_s2")


def stub(jb, last=False):
    A(f"s_waitcnt vmcnt({24 - 8 * jb})")
    for q in range(8):
        A(f"ds_write_b128 {v(V_W)}, {a(A_ST + 32 * jb + 4 * q, 4)} offset:{q * 256}")
    if not last:
        A("s_branch L_body")


stub(3)
A("L_s2:")
stub(2)
A("L_s01:")
A("s_cmp_eq_u32 s7, 1")
A("s_cbranch_scc1 L_s1")
stub(0)
A("L_s1:")
stub(1, last=True)
A("L_body:")
if STAMP:
    A(f"s_memrealtime s[34:35]")
    A("s_waitcnt lgkmcnt(0)")
    A("s_and_b32 s7, s6, 3")
    for k in range(4):
        A(f"s_cmp_eq_u32 s7, {k}")
        A(f"s_cselect_b32 s{94 + k}, s34, s{94 + k}")


def G(T, ks):
    return f"{M32} {v(ACC + 16 * T, 16)}, {v(WE + 32 * T + 4 * ks, 4)}, {a(A_F + 4 * ks, 4)}, {v(ACC + 16 * T, 16)}"


def E(T):
    return [f"v_exp_f32 v{ACC + 16 * T + r}, v{ACC + 16 * T + r}" for r in range(16)]


def O(T):
    return f"{M32} {v(ACC + 16 * T, 16)}, {v(V_HALF, 4)}, {v(ONES[0], 4)}, {v(ACC + 16 * T, 16)}"


def RC(T):
    out = []
    b = ACC + 16 * T
    pend = []
    for k in range(8):
        out.append(f"v_rcp_f32 v{b + 2 * k}, v{b + 2 * k}")
        out.append(f"v_rcp_f32 v{b + 2 * k + 1}, v{b + 2 * k + 1}")
        if k >= 1:
            out.append(f"v_cvt_pk_bf16_f32 v{V_HP + k - 1}, v{b + 2 * k - 2}, v{b + 2 * k - 1}")
        if k == 6:
            out.append(W2(T, 0))
    out.append(f"v_cvt_pk_bf16_f32 v{V_HP + 7}, v{b + 14}, v{b + 15}")
    return out


def W2(T, u):
    q = 2 * T + u
    c = v(V_B2, 4) if q == 0 else v(V_SC, 4)
    return f"{M16} {v(V_SC, 4)}, {v(V_HP + 4 * u, 4)}, {a(A_W2 + 4 * q, 4)}, {c}"


for ks in range(8):
    A(f"ds_read_b128 {a(A_F + 4 * ks, 4)}, {v(V_F + ks)}")
trr = []
for dt in range(8):
    for h2 in range(2):
        trr.append(f"ds_read_b64_tr_b16 {a(A_TR + 4 * dt + 2 * h2, 2)}, {v(V_T + dt)} offset:{4096 * h2}")
for ks in range(8):
    A(f"s_waitcnt lgkmcnt(7)")
    A(G(0, ks))
    A(trr[ks])
A(G(1, 0))
A.extend(trr[8:12])
A(G(1, 1))
A.extend(trr[12:16])
A.extend(interleave([G(1, ks) for ks in range(2, 8)], E(0)))
A(G(2, 0))
A(O(0))
A.extend(interleave([G(2, ks) for ks in range(1, 4)], E(1)))
A(O(1))
A.extend(interleave([G(2, ks) for ks in range(4, 8)], RC(0)))
A(G(3, 0))
A(W2(0, 1))
A.extend(interleave([G(3, ks) for ks in range(1, 5)], RC(1)))
A.extend(interleave([G(3, ks) for ks in range(5, 8)] + [W2(1, 1)], E(2)))
A(O(2))
A.extend(E(3))
A(O(3))
A.extend(RC(2))
rc3 = RC(3)
A.extend(rc3[:2])
A(W2(2, 1))
A.extend(rc3[2:])
A(W2(3, 1))
A("s_waitcnt lgkmcnt(0)")
for r in range(4):
    A(f"v_mul_f32 v{V_SC + r}, v{V_SC + r}, v{V_MVAL + r}")
A(f"v_cvt_pk_bf16_f32 v{V_APK}, v{V_SC}, v{V_SC + 1}")
A(f"v_cvt_pk_bf16_f32 v{V_APK + 1}, v{V_SC + 2}, v{V_SC + 3}")
A(f"v_mov_b32_dpp v{V_APK + 2}, v{V_APK} quad_perm:[1,0,3,2] row_mask:0xf bank_mask:0xf")
A(f"v_mov_b32_dpp v{V_APK + 3}, v{V_APK + 1} quad_perm:[1,0,3,2] row_mask:0xf bank_mask:0xf")
A("s_add_u32 s6, s6, 1")
A("s_and_b32 s7, s6, 3")
for dt in range(8):
    A(f"{M16} {a(A_O + 4 * dt, 4)}, {v(V_APK, 4)}, {a(A_TR + 4 * dt, 4)}, {a(A_O + 4 * dt, 4)}")
A("s_cmp_lg_u32 s7, 0")
A("s_cbranch_scc1 L_blk")
A("L_chunk_done:")
A("s_add_u32 s8, s8, 1")
A("s_cmp_lt_u32 s8, 2")
A("s_cbranch_scc1 L_chunk")

if int(OPT.get("burn", 0)):
    A(f"s_mov_b32 s7, {int(OPT.get('burn'))}")
    A("L_burn:")
    for r in range(64):
        A(f"v_exp_f32 v{64 + r}, v{64 + r}")
    A("s_sub_u32 s7, s7, 1")
    A("s_cmp_lg_u32 s7, 0")
    A("s_cbranch_scc1 L_burn")
A(f"v_lshlrev_b32 v66, 1, {L}")
for g in range(4):
    A(f"s_mov_b32 exec_lo, {hex(0xffff << (16 * g) if g < 2 else 0)}")
    A(f"s_mov_b32 exec_hi, {hex(0xffff << (16 * (g - 2)) if g >= 2 else 0)}")
    A(f"v_accvgpr_read_b32 v64, {a(A_O + 4 * g)}")
    A(f"v_accvgpr_read_b32 v65, {a(A_O + 4 * (g + 4))}")
A("s_mov_b64 exec, -1")
A("v_cvt_pk_bf16_f32 v64, v64, v65")
A(f"buffer_store_short v64, v66, {s(SRD_O, 4)}, 0 offen")
A(f"buffer_store_short_d16_hi v64, v66, {s(SRD_O, 4)}, 0 offen offset:128")
if STAMP:
    A("s_waitcnt vmcnt(0)")
    A(f"s_memrealtime s[34:35]")
    A("s_waitcnt lgkmcnt(0)")
    A(f"s_mov_b32 s98, s34")
    A("s_memtime s[34:35]")
    A("s_waitcnt lgkmcnt(0)")
    A("s_sub_u32 s99, s34, s100")
    A("s_lshl_b32 s7, s5, 6")
    A("v_mov_b32 v66, s7")
    for k in range(14):
        A(f"v_mov_b32 v67, s{86 + k}")
        A(f"global_store_dword v66, v67, s[84:85] offset:{4 * k}")
A("L_end:")
A("s_endpgm")
A("L_codeend:")

npad = A.pad(verbose=bool(int(OPT.get("v", 0))))

ref = open("cdna_kernels/%s.s.ref" % NAME).read().split("\n")
head = [l for l in ref if l.startswith(";") and "@launch" not in l and "Override" not in l and "grid=ceil" not in l]
out = "\n".join(head) + "\n"
out += f"; @launch grid=(256,1,1) block=(256,1,1) lds={LDS_BYTES}\n"
out += '.amdgcn_target "amdgcn-amd-amdhsa--gfx950"\n.text\n'
out += f".globl {NAME}_kernel\n.p2align 8\n.type {NAME}_kernel,@function\n"
out += A.text()
out += f""".section .rodata,"a"
.p2align 6
.amdhsa_kernel {NAME}_kernel
  .amdhsa_next_free_vgpr 512
  .amdhsa_next_free_sgpr 102
  .amdhsa_accum_offset 256
  .amdhsa_group_segment_fixed_size 0
  .amdhsa_kernarg_size 80
  .amdhsa_user_sgpr_count 2
  .amdhsa_user_sgpr_kernarg_segment_ptr 1
  .amdhsa_system_sgpr_workgroup_id_x 1
.end_amdhsa_kernel
"""
open(sys.argv[1], "w").write(out)
print(f"wrote {sys.argv[1]}: {len(A.ins)} lines, {npad} pad states")
```

```python
import re

TRANS = ("v_exp_f32", "v_rcp_f32", "v_log_f32", "v_rsq_f32", "v_sqrt_f32", "v_sin_f32", "v_cos_f32")
REG_RE = re.compile(r"^(-)?([vas])(?:(\d+)|\[(\d+):(\d+)\])$")


def regs_of(tok):
    tok = tok.strip()
    if tok in ("vcc",):
        return {"vcc"}
    if tok in ("exec",):
        return {"exec"}
    if tok == "m0":
        return {"m0"}
    m = REG_RE.match(tok)
    if not m:
        return set()
    f = m.group(2)
    if m.group(3) is not None:
        return {f + m.group(3)}
    return {f + str(i) for i in range(int(m.group(4)), int(m.group(5)) + 1)}


class Ins:
    def __init__(self, text):
        self.text = text
        t = text.split(";")[0].strip()
        self.label = None
        self.mn = ""
        self.reads = set()
        self.writes = set()
        self.kind = "other"
        self.srcC = set()
        self.srcAB = set()
        self.passes = 0
        self.states = 1
        self.target = None
        self.dpp = False
        if t.endswith(":"):
            self.label = t[:-1]
            self.kind = "label"
            self.states = 0
            return
        if t.startswith(".") or not t:
            self.kind = "directive"
            self.states = 0
            return
        parts = t.split(None, 1)
        mn = parts[0]
        self.mn = mn
        rest = parts[1] if len(parts) > 1 else ""
        ops = []
        depth = 0
        cur = ""
        for ch in rest:
            if ch == "[":
                depth += 1
            if ch == "]":
                depth -= 1
            if ch == "," and depth == 0:
                ops.append(cur.strip())
                cur = ""
            else:
                cur += ch
        if cur.strip():
            ops.append(cur.strip())
        mods = ""
        if ops:
            lp = ops[-1].split(None, 1)
            ops[-1] = lp[0]
            mods = lp[1] if len(lp) > 1 else ""
        self.ops = ops
        self.mods = mods
        R = [regs_of(o) for o in ops]
        if mn.startswith("v_mfma"):
            self.kind = "mfma"
            self.passes = 8 if "32x32" in mn else 4
            self.writes = R[0]
            self.srcAB = R[1] | R[2]
            self.srcC = R[3]
            self.reads = self.srcAB | self.srcC
        elif mn.startswith("v_"):
            self.kind = "trans" if mn.replace("_e32", "").replace("_e64", "") in TRANS else "valu"
            if "dpp" in mn or "quad_perm" in mods or "row_" in mods:
                self.dpp = True
            if mn.startswith(("v_addc_co", "v_add_co", "v_sub_co", "v_subb_co")):
                self.writes = R[0] | R[1]
                self.reads = set().union(*R[2:])
            elif mn.startswith("v_permlane"):
                self.writes = R[0] | R[1]
                self.reads = R[0] | R[1]
            elif mn.startswith(("v_fmac", "v_dot2c")):
                self.writes = R[0]
                self.reads = set().union(*R)
            else:
                self.writes = R[0]
                self.reads = set().union(*R[1:]) if len(R) > 1 else set()
                if self.dpp:
                    self.reads |= R[0]
        elif mn.startswith("ds_"):
            self.kind = "ds"
            if mn.startswith(("ds_read", "ds_bpermute", "ds_permute", "ds_swizzle")):
                self.writes = R[0]
                self.reads = set().union(*R[1:])
            else:
                self.reads = set().union(*R)
        elif mn.startswith(("buffer_", "global_")):
            self.kind = "vmem"
            is_lds = bool(re.search(r"\blds\b", mods)) or "_lds_" in mn
            self.lds = is_lds
            if "load" in mn and not is_lds:
                self.writes = R[0]
                self.reads = set().union(*R[1:])
            else:
                self.reads = set().union(*R)
                if is_lds:
                    self.reads |= {"m0"}
            self.wide_store = "store" in mn and ("x4" in mn or "x3" in mn)
            if self.wide_store:
                self.sdata = R[0] if mn.startswith("buffer_") else R[1]
        elif mn.startswith("s_"):
            self.kind = "salu"
            if mn == "s_nop":
                self.states = int(ops[0], 0) + 1
            elif mn.startswith(("s_branch", "s_cbranch")):
                self.kind = "branch"
                self.target = ops[0]
            elif mn in ("s_endpgm",):
                self.kind = "end"
            elif mn.startswith(("s_cmp", "s_waitcnt", "s_barrier", "s_setprio", "s_sleep")):
                self.reads = set().union(*R) if R else set()
            else:
                self.writes = R[0] if R else set()
                self.reads = set().union(*R[1:]) if len(R) > 1 else set()
        m = re.search(r"@use:(\S+)", text)
        self.use = (regs_of(m.group(1)) or {"#" + m.group(1)}) if m else set()
        m = re.search(r"@def:(\S+)", text)
        self.defs = {"#" + m.group(1)} if m else set()


def is_vec(r):
    return r[0] in "va" and r not in ("vcc",)


def required(P, C):
    need = 0
    pv = P.kind in ("valu", "trans")
    cv = C.kind in ("valu", "trans")
    if pv and C.kind == "mfma" and (P.writes & C.reads):
        need = max(need, 3 if P.kind == "trans" else 2)
    if P.kind == "mfma":
        D = P.writes
        if C.kind == "mfma":
            if D & C.srcAB:
                need = max(need, P.passes + 4)
            if D & C.srcC:
                if not (D == C.srcC and P.passes == C.passes):
                    need = max(need, P.passes + 2)
            if (D & C.writes) and not (D == C.srcC and P.passes == C.passes):
                need = max(need, P.passes + 2)
        elif cv or C.kind in ("ds", "vmem"):
            if D & (C.reads | C.writes):
                need = max(need, P.passes + 4)
        if (cv or C.kind in ("ds", "vmem")) and (P.srcC & C.writes):
            need = max(need, P.passes - 1)
    if P.kind == "trans" and C.kind == "valu" and (P.writes & C.reads):
        need = max(need, 1)
    if P.kind == "trans" and C.kind in ("ds", "vmem") and (P.writes & C.reads):
        need = max(need, 1)
    if pv:
        sw = {r for r in P.writes if not is_vec(r)}
        if sw:
            if cv and (sw & C.reads):
                need = max(need, 4 if C.mn.startswith(("v_readlane", "v_writelane")) else 2)
            if C.kind == "vmem" and (sw & C.reads):
                need = max(need, 5)
            if C.kind in ("salu", "branch") and (sw & C.reads):
                need = max(need, 1)
        vw = {r for r in P.writes if is_vec(r)}
        if vw:
            if C.mn.startswith(("v_readfirstlane", "v_readlane")) and (vw & C.reads):
                need = max(need, 1)
            if cv and (C.dpp or C.mn.startswith("v_permlane")) and (vw & C.reads):
                need = max(need, 2)
    if P.kind == "salu" and "m0" in P.writes and C.kind == "vmem" and "m0" in C.reads:
        need = max(need, 1)
    if P.kind == "vmem" and getattr(P, "wide_store", False) and (P.sdata & C.writes):
        need = max(need, 2 if cv else 1)
    return need


MAXD = 14


class Asm:
    def __init__(self):
        self.ins = []

    def __call__(self, text):
        for line in text.strip().split("\n"):
            line = line.strip()
            if line:
                self.ins.append(Ins(line))

    def extend(self, lst):
        for l in lst:
            self(l)

    def _preds(self):
        lab = {x.label: i for i, x in enumerate(self.ins) if x.label}
        preds = [[] for _ in self.ins]
        for i, x in enumerate(self.ins):
            if x.kind == "end":
                continue
            if x.kind == "branch":
                preds[lab[x.target]].append(i)
                if x.mn == "s_branch":
                    continue
            if i + 1 < len(self.ins):
                preds[i + 1].append(i)
        return preds

    def pad(self, verbose=False):
        total = 0
        changed = True
        start = 0
        while changed:
            changed = False
            preds = self._preds()
            for i in range(start, len(self.ins)):
                C = self.ins[i]
                if C.kind in ("label", "directive"):
                    continue
                short = 0
                why = None
                stack = [(p, 0) for p in preds[i]]
                seen = {}
                while stack:
                    j, d = stack.pop()
                    if seen.get(j, 99) <= d:
                        continue
                    seen[j] = d
                    P = self.ins[j]
                    if P.kind not in ("label", "directive"):
                        n = required(P, C)
                        if n - d > short:
                            short = n - d
                            why = P
                    nd = d + P.states
                    if nd < MAXD:
                        for p in preds[j]:
                            stack.append((p, nd))
                if short > 0:
                    if verbose:
                        print(f"pad {short} before [{C.text}] due to [{why.text}]")
                    self.ins.insert(i, Ins(f"s_nop {short - 1}"))
                    total += short
                    changed = True
                    start = i
                    break
        return total

    def text(self):
        out = []
        for x in self.ins:
            if x.kind == "label":
                out.append(x.text)
            else:
                out.append("  " + x.text)
        return "\n".join(out) + "\n"


def interleave(*streams_with_weights):
    items = []
    for s in streams_with_weights:
        n = len(s)
        for k, x in enumerate(s):
            items.append(((k + 0.5) / n, len(items), x))
    items.sort(key=lambda t: (t[0], t[1]))
    return [x for _, _, x in items]


TRANS_LAT = 22


def _cost(x):
    if x.kind == "trans":
        return 8
    if x.kind == "mfma":
        return 8
    if x.kind == "vmem":
        return (20 if " st" in x.text else 70) if "clump" in x.mn else 12
    if x.kind == "ds":
        return 14 if x.mn.startswith("ds_write_b128") else 5
    if x.kind == "valu":
        e32 = x.mn in ("v_mul_f32", "v_add_u32", "v_sub_f32", "v_and_b32", "v_xor_b32", "v_mov_b32", "v_lshlrev_b32",
                       "v_lshrrev_b32", "v_add_f32", "v_or_b32")
        return 4 if e32 else 5
    return 4


def _lat(P, C, raw):
    if not raw:
        if P.kind == "mfma" and (P.writes & C.writes) and C.kind != "mfma":
            return P.passes * 4 + 24
        if P.kind == "mfma" and (P.srcC & C.writes) and C.kind != "mfma":
            return P.passes * 4
        if P.kind == "ds" and (P.writes & C.writes):
            return 130
        return _cost(P)
    if P.kind == "mfma":
        if C.kind == "mfma" and P.writes == C.srcC and not (P.writes & C.srcAB):
            return P.passes * 4
        return P.passes * 4 + 24
    if P.kind == "ds":
        return 130
    if P.kind == "trans":
        return 28 if C.kind == "mfma" else TRANS_LAT
    if P.kind == "valu":
        if C.kind == "mfma" or C.dpp:
            return 14
        if any(not is_vec(r) for r in (P.writes & C.reads)):
            return 14 if C.kind != "vmem" else 26
        return _cost(P)
    return _cost(P)


def schedule(lines, prio_boost=None, ready0=None, mode="cp", trace=False):
    ins = [Ins(l) for l in lines]
    n = len(ins)
    tags = []
    for x in ins:
        t = x.text.split(";", 1)[1] if ";" in x.text else ""
        tags.append(t.split())
    succ = [[] for _ in range(n)]
    npred = [0] * n
    def edge(i, j, lat):
        succ[i].append((j, lat))
        npred[j] += 1
    for j in range(n):
        C = ins[j]
        tj = tags[j]
        rj = {t[3:] for t in tj if t.startswith("@r:")}
        wj = {t[3:] for t in tj if t.startswith("@w:")}
        fj = "@fence" in tj
        vj = "@vmw" in tj
        for i in range(j):
            P = ins[i]
            ti = tags[i]
            lat = None
            if P.writes & C.reads:
                lat = _lat(P, C, True)
            if (P.reads & C.writes) or (P.writes & C.writes):
                l2 = _lat(P, C, False)
                lat = l2 if lat is None else max(lat, l2)
            ri = {t[3:] for t in ti if t.startswith("@r:")}
            wi = {t[3:] for t in ti if t.startswith("@w:")}
            if {t[3:] for t in ti if t.startswith("@x:")} & {t[3:] for t in tj if t.startswith("@y:")}:
                lat = max(lat or 0, _cost(P))
            if (wi & (rj | wj)) or (ri & wj):
                lat = max(lat or 0, _cost(P))
            mem_i = P.kind in ("ds", "vmem") or "@fence" in ti or "@vmw" in ti
            mem_j = C.kind in ("ds", "vmem") or fj or vj
            if ("@fence" in ti and mem_j) or (fj and mem_i):
                slow = fj and P.kind == "ds" and ("lgkmcnt(0)" in C.text or (getattr(P, "defs", set()) & getattr(C, "use", set())))
                lat = max(lat or 0, 110 if slow else _cost(P))
            if (P.kind == "vmem" or "@vmw" in ti) and (C.kind == "vmem" or vj):
                lat = max(lat or 0, _cost(P))
            if P.kind == "salu" and C.kind == "salu" and not (P.mn.startswith("s_waitcnt") or C.mn.startswith("s_waitcnt")):
                lat = max(lat or 0, 4)
            if lat is not None:
                edge(i, j, lat)
    prio = [0] * n
    for i in range(n - 1, -1, -1):
        p = _cost(ins[i])
        for j, lat in succ[i]:
            p = max(p, lat + prio[j])
        prio[i] = p
    if mode == "order":
        for i in range(n):
            pos = i
            for t in tags[i]:
                if t.startswith("@o:"):
                    pos = float(t[3:])
            prio[i] = -pos + (100000 if ins[i].kind == "mfma" else 0)
    for i in range(n):
        for t in tags[i]:
            if t.startswith("@p:"):
                prio[i] += int(t[3:])
    ready = [0] * n
    for i in range(n):
        for t in tags[i]:
            if t.startswith("@after:"):
                ready[i] = int(t[7:])
        if ready0:
            for r in ins[i].reads | ins[i].writes:
                if r in ready0:
                    ready[i] = max(ready[i], ready0[r])
    rslot = [0] * n
    avail = [i for i in range(n) if npred[i] == 0]
    t = 0
    pipe = 0
    order = []
    slot = 0
    while avail:
        def rt(i):
            r = ready[i]
            if ins[i].kind == "mfma":
                r = max(r, pipe)
            return r
        cands = [i for i in avail if rt(i) <= t and rslot[i] <= slot]
        if cands:
            i = max(cands, key=lambda i: (prio[i], -i))
        else:
            i = min(avail, key=lambda i: (max(rt(i), t + 4 * max(0, rslot[i] - slot)), -prio[i]))
            t = max(rt(i), t + 4 * max(0, rslot[i] - slot))
            slot = max(slot, rslot[i])
        avail.remove(i)
        order.append(i)
        slot += 1
        if trace:
            print(f"{t:5d} {lines[i]}")
        if ins[i].kind == "mfma":
            pipe = t + ins[i].passes * 4
        for j, lat in succ[i]:
            ready[j] = max(ready[j], t + lat)
            rslot[j] = max(rslot[j], slot + required(ins[i], ins[j]))
            npred[j] -= 1
            if npred[j] == 0:
                avail.append(j)
        t += _cost(ins[i])
    return [lines[i] for i in order], t


def auto_lgkm(asm):
    out = []
    q = []
    for x in asm.ins:
        if x.kind in ("label", "directive"):
            out.append(x)
            continue
        if x.mn == "s_waitcnt":
            m = re.search(r"lgkmcnt\((\d+)\)", x.text)
            if m:
                k = int(m.group(1))
                if len(q) > k:
                    q = q[len(q) - k:] if k else []
            out.append(x)
            continue
        touched = x.reads | x.writes | getattr(x, 'use', set())
        idx = -1
        for i, d in enumerate(q):
            if d & touched:
                idx = i
        if idx >= 0:
            k = len(q) - 1 - idx
            k = min(k, 15)
            out.append(Ins(f"s_waitcnt lgkmcnt({k})"))
            q = q[len(q) - k:] if k else []
        if x.kind == "ds":
            q.append(set(x.writes) | x.defs)
        if x.kind in ("branch", "end") and any(q):
            tagok = "@pend" in x.text
            if not tagok:
                raise RuntimeError(f"pending ds reads at branch {x.text}: {[d for d in q if d]}")
        out.append(x)
    asm.ins = out
```

```python
import sys
import os

sys.path.insert(0, os.path.dirname(os.path.abspath(__file__)))
from asmlib import Asm, Ins, schedule, auto_lgkm

NAME = "standalone__sequential_behavior_din__recsys"
OPT = dict(a.split("=") if "=" in a else (a, "1") for a in sys.argv[2:])
STAMP = int(OPT.get("stamp", 0))
HIST_POL = OPT.get("hpol", "nt").replace("+", " ").replace("none", "")
VERB = int(OPT.get("v", 0))
DIST = int(OPT.get("dist", 6))

N0 = 131072
LROW, LMSK, LSC = N0, N0 + 4096, N0 + 8192
TCP = N0 + 12288
NBX = TCP + 1024
DTAB = NBX + 64
LDS_BYTES = DTAB + 8192
OOB = 0x100000

NVG = 256
V_FA = 0
V_TA = 16
V_EN = 20
V_K = 22
V_B2 = 24
V_OA, V_ENA, V_MVA = 25, 26, 27
V_SRA, V_SWA, V_MV, V_ST = 28, 29, 30, 31
V_SC = 32
V_HP = 36
V_CPK = 44
V_DMA = 48
P_TRS, P_DG, P_TF, V_B1 = 56, 57, 58, 59
ACA = (64, 80)
ACB = 96
ACX = 112
WE = 128
A_F = 0
A_TR = 64
A_W2 = 80
A_O = 88
A_HALF = 120
ONES = {2: 122, 0: 124, 3: 126, 1: 128}
A_APK = 132
A_SELH, A_SELL = 140, 144
A_RS = 148
A_CACC = 232
NAG = 240


def we(b, ks):
    return WE + 32 * b + 4 * ks


def v(i, n=1):
    return f"v{i}" if n == 1 else f"v[{i}:{i + n - 1}]"


def a(i, n=1):
    return f"a{i}" if n == 1 else f"a[{i}:{i + n - 1}]"


def s(i, n=1):
    return f"s{i}" if n == 1 else f"s[{i}:{i + n - 1}]"


M32 = "v_mfma_f32_32x32x16_bf16"
M16 = "v_mfma_f32_16x16x32_bf16"

A = Asm()
nstamp = [0]
CLUMPS = {}


pend = []


def stamp_lines(flush):
    out = []
    if flush:
        for k in pend:
            r = 86 + 4 * (k % 4)
            out += [f"v_writelane_b32 v{V_ST}, s{r}, {k}", f"v_writelane_b32 v{V_ST}, s{r + 2}, {32 + k}"]
        pend.clear()
    k = nstamp[0]
    nstamp[0] += 1
    assert len(pend) < 4
    pend.append(k)
    r = 86 + 4 * (k % 4)
    return out + [f"s_memrealtime s[{r}:{r + 1}]", f"s_memtime s[{r + 2}:{r + 3}]"]


def stamp(flush=False):
    if STAMP:
        if flush:
            A("s_waitcnt lgkmcnt(0)")
        A.extend(stamp_lines(flush))


def sstamp():
    if not STAMP:
        return []
    k = nstamp[0]
    CLUMPS[f"st{k}"] = stamp_lines(True)
    return [f"buffer_clump_store v{V_ST}"]


vm_log = []


def vm(text, tag):
    vm_log.append(tag)
    return text


def vmcount(tag):
    last = max(i for i, t in enumerate(vm_log) if t == tag)
    n = len(vm_log) - 1 - last
    assert n <= 63
    return n


def emit_sched(lines, name, **kw):
    o, t = schedule(lines, mode="order", **kw)
    if VERB:
        print(f"region {name}: {len(o)} instrs, model {t} cycles")
    for l in o:
        if l.startswith("buffer_clump"):
            A.extend(CLUMPS[l.split(";")[1].split()[0]])
        else:
            A(l if ("@def" in l or "@use" in l) else l.split(";")[0])


def mix(main, extra, every, start=0):
    out = []
    extra = list(extra)
    for i, l in enumerate(main):
        if i >= start and (i - start) % every == 0 and extra:
            out.append(extra.pop(0))
        out.append(l)
    return out + extra


def mixg(main, groups, every, start=0):
    out = []
    groups = list(groups)
    for i, l in enumerate(main):
        if i >= start and (i - start) % every == 0 and groups:
            out += groups.pop(0)
        out.append(l)
    for g_ in groups:
        out += g_
    return out


def sbarrier(tag, lgkm0=False, extra=""):
    o = []
    w = (f"vmcnt({vmcount(tag)}) " if tag else "") + ("lgkmcnt(0)" if lgkm0 else "")
    if w:
        o.append(f"s_waitcnt {w}")
    return o + [f"s_barrier ; @fence {extra}"]


SRD_H, SRD_M, SRD_T, SRD_W1, SRD_W2, SRD_O = 36, 40, 44, 48, 56, 60
SOFF = {(0, 0): "s52", (0, 1): "0", (1, 0): "s53", (1, 1): "s54", (2, 0): "s55", (2, 1): "s72", (3, 0): "s73", (3, 1): "s74"}
SST = {0: "0", 1: "s6", 2: "s10", 3: "s15"}
ROW0 = (0, 256, 128, 384)


def w1_piece(st, k):
    out = []
    if k % 4 == 0:
        out.append(f"s_add_u32 m0, s14, {st * 8192 + (k >> 2) * 4096}")
    out.append(vm(f"buffer_load_dwordx4 v{V_DMA + k}, {s(SRD_W1, 4)}, {SST[st]} offen offset:{(k & 3) * 1024} lds", f"S{st}{'ab'[k >> 2]}"))
    return out


def hist_load(sig):
    b, blk = sig & 3, sig >> 2
    rd = f"ds_read_b64 {v(V_EN, 2)}, v{V_ENA} offset:{b * 1024 + blk * 128}"
    g0 = [f"s_add_u32 m0, s11, {b * 32768 + (blk & 3) * 8192}",
          f"v_add_u32 v{V_EN}, v{V_EN}, v{V_K}",
          vm(f"buffer_load_dwordx4 v{V_EN}, {s(SRD_H, 4)}, {SOFF[(b, 0)]} offen {HIST_POL} lds", f"H{sig}")]
    g1 = [f"v_add_u32 v{V_EN + 1}, v{V_EN + 1}, v{V_K + 1}",
          vm(f"buffer_load_dwordx4 v{V_EN + 1}, {s(SRD_H, 4)}, {SOFF[(b, 1)]} offen offset:1024 {HIST_POL} lds", f"H{sig}")]
    return [[rd], g0, g1]


L, G_, HI, N32, B0, B1, PI, GA, M2, M3, L3, VOOB, Q2 = (f"v{r}" for r in range(112, 125))
t0, t1, t2, t3 = "v60", "v61", "v62", "v63"
A(f"{NAME}_kernel:")
A("s_cmp_ge_u32 s2, 256")
A("s_cbranch_scc1 L_end")
A("s_load_dwordx16 s[16:31], s[0:1], 0")
if STAMP:
    A("s_load_dwordx2 s[84:85], s[0:1], 72")
A("s_getpc_b64 s[12:13]")
A("L_pc:")
A(f"v_lshrrev_b32 {t0}, 6, v0")
A(f"v_and_b32 {L}, 63, v0")
A(f"v_readfirstlane_b32 s5, {t0}")
A(f"v_and_b32 {B0}, 1, v0")
A("s_bfe_u32 s7, s2, 0x50003")
A("s_lshl2_add_u32 s8, s7, s5")
A("s_lshl_b32 s7, s8, 8")
A(f"v_lshl_add_u32 {t0}, {B0}, 7, s7")
A(f"v_min_u32 {t0}, L_codeend-L_pc-4, {t0}")
A(vm(f"global_load_dword v128, {t0}, s[12:13]", "pf"))
stamp()
A(f"v_and_b32 {t1}, 7, v0")
A("s_lshl_b32 s7, s8, 10")
A(f"v_lshl_add_u32 {t1}, {t1}, 7, s7")
A(f"v_and_b32 {L3}, 3, v0")
A("s_lshl_b32 s14, s5, 15")
for r, n in ((SRD_M, 400), (SRD_T, 1024), (SRD_W1, 131072)):
    A(f"s_mov_b32 s{r + 2}, {n}")
    A(f"s_mov_b32 s{r + 3}, 0x20000")
A(f"v_lshrrev_b32 {t2}, 2, {L}")
A(f"v_lshlrev_b32 {t2}, 8, {t2}")
A(f"v_lshl_add_u32 {t2}, {L3}, 4, {t2}")
A("s_lshl_b32 s80, s5, 6")
A(f"v_add_u32 v{V_DMA}, s80, {t2}")
for k in range(1, 8):
    A(f"v_add_u32 v{V_DMA + k}, {ROW0[k >> 1] * 256 + (k & 1) * 4096 - (k & 3) * 1024}, v{V_DMA}")
A("s_lshl_b32 s7, s5, 8")
A(f"v_lshl_add_u32 {t2}, {L}, 2, s7")
A(f"v_lshlrev_b32 {t3}, 3, {L}")
A("s_lshl2_add_u32 s8, s2, s5")
A("s_mul_i32 s8, s8, 400")
A("s_lshl_b32 s9, s2, 10")
A("s_movk_i32 s6, 8192")
A("s_movk_i32 s10, 16384")
A("s_movk_i32 s15, 24576")
A(f"s_add_u32 m0, s7, {TCP}")
A("s_waitcnt lgkmcnt(0)")
A(vm(f"global_load_dword v129, {t1}, s[22:23]", "pf"))
A(f"s_add_u32 s{SRD_M}, s20, s8")
A(f"s_addc_u32 s{SRD_M + 1}, s21, 0")
A(f"s_add_u32 s{SRD_T}, s16, s9")
A(f"s_addc_u32 s{SRD_T + 1}, s17, 0")
A(vm(f"buffer_load_dword v132, {t2}, {s(SRD_T, 4)}, 0 offen", "sm"))
A(vm(f"buffer_load_dwordx2 v[130:131], {t3}, {s(SRD_M, 4)}, 0 offen", "sm"))
A(f"s_mov_b32 s{SRD_W1}, s22")
A(f"s_mov_b32 s{SRD_W1 + 1}, s23")
A(vm(f"buffer_load_dword {t2}, {s(SRD_T, 4)}, 0 offen lds", "sm"))
pieces = [(st, k) for st in range(4) for k in range(8)]
NPRE = int(OPT.get("npre", 10))
for st, k in pieces[:NPRE]:
    A.extend(w1_piece(st, k))
pieces = pieces[NPRE:]
stamp()


def take(n):
    global pieces
    r = [w1_piece(st, k) for st, k in pieces[:n]]
    pieces = pieces[n:]
    return r


u0, u1, u2 = "v125", "v126", "v127"
CB = f"""v_lshrrev_b32 {HI}, 5, {L}
v_bfe_u32 {B1}, {L}, 1, 1
v_bfe_u32 {GA}, {L}, 4, 1
v_bfe_u32 {M2}, {L}, 2, 1
v_bfe_u32 {M3}, {L}, 3, 1
v_bfe_u32 {Q2}, {L}, 2, 2
v_lshrrev_b32 {G_}, 4, {L}
v_and_b32 {N32}, 31, {L}
v_and_b32 {PI}, 0x13, {L}
v_lshl_or_b32 {PI}, {M2}, 3, {PI}
v_lshl_or_b32 {PI}, {M3}, 2, {PI}
v_cmp_eq_u32 s[76:77], {M2}, {GA}
v_cmp_eq_u32 s[78:79], {M2}, {HI}
v_mov_b32 {VOOB}, {OOB}
s_mov_b32 s33, 0xbfb8aa3b
s_cmp_eq_u32 s5, 0
s_cselect_b32 s32, 0xffff, 0
v_mov_b32 v136, 0
v_mov_b32 v137, 0
v_mov_b32 v138, 0
v_mov_b32 v139, 0
v_mov_b32 v140, 2.0
v_mov_b32 v141, 2.0
v_mov_b32 v142, 2.0
v_mov_b32 v143, 2.0
s_lshl_b32 s75, s5, 10
s_add_u32 s75, s75, {LROW}
s_lshl_b32 s11, s5, 11
s_add_u32 s81, s11, {DTAB}
v_lshl_add_u32 {t0}, {L}, 4, s75
v_lshl_add_u32 {t1}, {L}, 4, s81
ds_write_b128 {t1}, v[136:139]
ds_write_b128 {t1}, v[136:139] offset:1024
ds_write_b128 {t0}, v[140:143]
ds_write_b128 {t0}, v[136:139] offset:4096
v_lshl_add_u32 v133, {L}, 5, s81
v_lshl_add_u32 v133, {L3}, 2, v133
v_lshlrev_b32 {t0}, 5, {GA}
v_lshl_add_u32 {t0}, {B0}, 4, {t0}
v_lshl_add_u32 {t0}, {B1}, 3, {t0}
v_lshl_add_u32 {t0}, {Q2}, 6, {t0}
v_lshl_add_u32 {t0}, {HI}, 9, {t0}
v_add_u32 v{P_TRS}, s14, {t0}
v_and_b32 {t0}, 15, {PI}
v_lshlrev_b32 {t0}, 4, {t0}
v_lshl_add_u32 {t0}, {GA}, 11, {t0}
v_add_u32 {t0}, {DTAB}, {t0}
v_cndmask_b32 v{P_DG}, {VOOB}, {t0}, s[78:79]
v_lshlrev_b32 {t0}, 8, {L3}
v_lshl_add_u32 {t0}, {HI}, 4, {t0}
v_add_u32 {t0}, {TCP}, {t0}
v_cndmask_b32 v{P_TF}, {VOOB}, {t0}, s[76:77]
v_lshlrev_b32 {t0}, 4, {B0}
v_mov_b32 {t1}, 0xffff
v_lshlrev_b32 {t0}, {t0}, {t1}
v_cndmask_b32 {t0}, 0, {t0}, s[78:79]
v_lshl_or_b32 {t1}, {M3}, 1, {B1}
v_and_b32 {t2}, 0xbfb9bfb9, {t0}
v_and_b32 {t3}, 0x3b2c3b2c, {t0}""".split("\n")
for x in range(4):
    CB.append(f"v_cmp_eq_u32 {s(64 + 2 * x, 2)}, {x}, {t1}")
for x in range(4):
    CB.append(f"v_cndmask_b32 v{144 + x}, 0, {t2}, {s(64 + 2 * x, 2)}")
    CB.append(f"v_cndmask_b32 v{148 + x}, 0, {t3}, {s(64 + 2 * x, 2)}")
for x in range(8):
    CB.append(f"v_accvgpr_write_b32 {a(A_SELH + x)}, v{144 + x}")
CB += f"""v_lshlrev_b32 v152, 10, {L}
v_add_u32 v153, 0x100, v152
v_add_u32 v154, 0x200, v152
v_add_u32 v155, 0x300, v152
s_lshl_b32 s7, s5, 2
s_add_u32 s7, s7, {NBX}
v_mov_b32 v134, s7""".split("\n")
A.extend(CB)

CC = f"""s_mul_i32 s8, s2, 204800
s_sub_u32 s8, s8, 1024
s_subb_u32 s7, 0, 0
s_add_u32 s{SRD_H}, s18, s8
s_addc_u32 s{SRD_H + 1}, s19, s7
s_add_u32 s{SRD_O}, s30, s9
s_addc_u32 s{SRD_O + 1}, s31, 0
s_mov_b32 s{SRD_H + 2}, {204800 + 1024}
s_mov_b32 s{SRD_H + 3}, 0x20000
s_mov_b32 s{SRD_O + 2}, 1024
s_mov_b32 s{SRD_O + 3}, 0x20000
s_mov_b32 s{SRD_W2}, s26
s_mov_b32 s{SRD_W2 + 1}, s27
s_mov_b32 s{SRD_W2 + 2}, 256
s_mov_b32 s{SRD_W2 + 3}, 0x20000""".split("\n")
for (b_, i_), r in SOFF.items():
    if r != "0":
        CC.append(f"s_mov_b32 {r}, {b_ * 51200 + 1024 * (1 - i_)}")
CC += f"""v_lshl_add_u32 {t1}, {PI}, 1, s80
v_lshl_add_u32 {t2}, {HI}, 4, s80
v_cndmask_b32 {t2}, {VOOB}, {t2}, s[76:77]""".split("\n")
CC += [vm(f"global_load_ushort v{V_B1}, {t1}, s[24:25]", "sm2"), vm(f"global_load_ushort v{V_B2}, v136, s[28:29]", "sm2"),
       vm(f"buffer_load_dwordx4 {a(A_W2, 4)}, {t2}, {s(SRD_W2, 4)}, 0 offen", "sm2"),
       vm(f"buffer_load_dwordx4 {a(A_W2 + 4, 4)}, {t2}, {s(SRD_W2, 4)}, 0 offen offset:32", "sm2")]
CC += f"""s_lshl3_add_u32 s7, s5, {LROW}
v_lshl_add_u32 v{V_ENA}, {G_}, 5, s7
v_and_b32 {t0}, 15, {L}
v_xor_b32 {t0}, {GA}, {t0}
v_lshlrev_b32 {t0}, 4, {t0}
v_xor_b32 v{V_K}, s80, {t0}
v_xor_b32 v{V_K + 1}, 32, v{V_K}
v_and_b32 {u0}, 7, {L}
v_lshl_or_b32 {u1}, {u0}, 1, {M3}
v_xor_b32 {u1}, {u1}, {HI}
v_lshlrev_b32 {u1}, 4, {u1}
v_lshl_add_u32 {u1}, {u0}, 10, {u1}
v_lshrrev_b32 {u2}, 3, {N32}
v_lshl_add_u32 v{V_FA}, {u2}, 8, {u1}""".split("\n")
for ks in range(1, 16):
    CC.append(f"v_xor_b32 v{V_FA + ks}, {((ks & 7) << 5) + (ks >> 3) * 65536}, v{V_FA}")
CC += f"""v_bfe_u32 {u0}, {L}, 2, 3
v_lshl_or_b32 {u1}, {u0}, 1, {HI}
v_xor_b32 {u1}, {u1}, {B1}
v_lshlrev_b32 {u1}, 4, {u1}
v_lshl_add_u32 {u1}, {u0}, 10, {u1}
v_lshl_add_u32 {u1}, {HI}, 8, {u1}
v_lshl_add_u32 {u1}, {B0}, 3, {u1}
v_xor_b32 v{V_TA}, s80, {u1}
v_xor_b32 v{V_TA + 1}, 32, v{V_TA}
v_xor_b32 v{V_TA + 2}, 0x10000, v{V_TA}
v_xor_b32 v{V_TA + 3}, 0x10020, v{V_TA}
v_lshl_add_u32 v{V_OA}, {N32}, 1, s80
s_mov_b32 s7, {LMSK}
v_lshl_add_u32 v{V_MVA}, {N32}, 2, s7
s_mov_b32 s8, {LSC}
v_lshl_add_u32 v{V_SRA}, {G_}, 4, s8
v_lshl_add_u32 v{V_SRA}, {L3}, 6, v{V_SRA}
s_add_u32 s8, s8, s80
v_lshl_add_u32 v{V_SWA}, {Q2}, 4, s8
v_lshl_add_u32 v{V_SWA}, {GA}, 3, v{V_SWA}
v_lshl_add_u32 v{V_SWA}, {L3}, 1, v{V_SWA}
v_cmp_gt_u32 vcc, 32, {L}
v_mov_b32 {u0}, 0x3f803f80
v_mov_b32 {u1}, 0x3f003f00
v_cndmask_b32 {u0}, 0, {u0}, vcc
v_accvgpr_write_b32 {a(A_HALF)}, {u1}
v_accvgpr_write_b32 {a(A_HALF + 4)}, {u0}
v_accvgpr_write_b32 {a(A_HALF + 9)}, {u0}""".split("\n")
for r in (1, 2, 3, 5, 6, 7, 8, 10, 11):
    CC.append(f"v_accvgpr_write_b32 {a(A_HALF + r)}, 0")
A.extend(CC)
stamp()

A(f"s_waitcnt vmcnt({vmcount('sm')})")
stamp(True)
RL = """v_and_b32 v135, 0xffff0000, v132
v_lshlrev_b32 v132, 16, v132
v_mul_f32 v132, s33, v132
v_mul_f32 v135, s33, v135
v_lshlrev_b32 v156, 16, v130
v_cvt_pk_bf16_f32 v132, v132, v135
v_and_b32 v157, 0xffff0000, v130
ds_write_b16 v133, v132
ds_write_b16_d16_hi v133, v132 offset:18
v_lshlrev_b32 v158, 16, v131
v_and_b32 v159, 0xffff0000, v131""".split("\n")
for j in range(4):
    RL.append(f"v_cmp_neq_f32 {s(64 + 2 * j, 2)}, 0, v{156 + j}")
RL += """v_mbcnt_lo_u32_b32 v160, s64, 0
s_bcnt1_i32_b64 s12, s[64:65]
v_mbcnt_hi_u32_b32 v160, s65, v160
s_bcnt1_i32_b64 s13, s[66:67]
v_mbcnt_lo_u32_b32 v160, s66, v160
s_bcnt1_i32_b64 s8, s[68:69]
v_mbcnt_hi_u32_b32 v160, s67, v160
s_bcnt1_i32_b64 s9, s[70:71]
v_mbcnt_lo_u32_b32 v160, s68, v160
s_add_u32 s12, s12, s13
v_mbcnt_hi_u32_b32 v160, s69, v160
s_add_u32 s8, s8, s9
v_mbcnt_lo_u32_b32 v160, s70, v160
s_add_u32 s12, s12, s8
v_mbcnt_hi_u32_b32 v160, s71, v160""".split("\n")
RL2 = """s_cmp_gt_u32 s12, 128
v_addc_co_u32 v161, s[78:79], v160, 0, s[64:65]
s_cselect_b32 s8, 3, 2
v_addc_co_u32 v162, s[78:79], v161, 0, s[66:67]
s_cselect_b32 s9, 7, 3
v_addc_co_u32 v163, s[78:79], v162, 0, s[68:69]
v_mov_b32 v135, s8""".split("\n")
RL3 = [f"v_and_b32 v{164 + j}, s9, v{160 + j}" for j in range(4)] + ["ds_write_b32 v134, v135"]
RL3 += [f"v_lshrrev_b32 v{160 + j}, s8, v{160 + j}" for j in range(4)]
RL3 += [f"v_lshl_add_u32 v{164 + j}, v{164 + j}, 7, s75" for j in range(4)]
RL3 += [f"v_lshl_add_u32 v{160 + j}, v{160 + j}, 2, v{164 + j}" for j in range(4)]
NMID = int(OPT.get("nmid", 6))
mid = take(NMID)
A.extend(mixg(RL, mid[:4], 7, 0) + RL2 + mixg(RL3, mid[4:], 7, 0))
for j in range(4):
    A(f"s_mov_b64 exec, {s(64 + 2 * j, 2)}")
    A(f"ds_write2st64_b32 v{160 + j}, v{152 + j}, v{156 + j} offset0:0 offset1:16")
A("s_mov_b64 exec, -1")
stamp()


PTS = (ACB, ACX)


def kstep(ks):
    st, u = ks >> 1, ks & 1
    rs = A_RS + 28 * (ks % 3)
    RA, RC, RB, RD_, TF, DG = rs, rs + 4, rs + 8, rs + 12, rs + 16, rs + 20
    base = st * 8192 + u * 1024
    tr = lambda reg, off, tag: [f"ds_read_b64_tr_b16 {a(reg + 2 * j2, 2)}, v{P_TRS} offset:{base + off + j2 * 256} ; @r:ldS{st}{tag}" for j2 in range(2)]
    r1 = tr(RA, 0, "a") + tr(RC, 2048, "a")
    r2 = tr(RD_, 6144, "b") + tr(RB, 4096, "b")
    r3 = [f"ds_read_b128 {a(DG + 4 * p_, 4)}, v{P_DG} offset:{p_ * 4096 + ks * 256} ; @r:tab" for p_ in range(2)]
    r3.append(f"ds_read_b128 {a(TF, 4)}, v{P_TF} offset:{32 * ks} ; @r:tab")
    pt = PTS[ks & 1]
    d0 = ACA[ks & 1]
    pm = [f"{M32} {v(pt, 16)}, {a(A_SELH, 4)}, {a(RA, 4)}, 0",
          f"{M32} {v(pt, 16)}, {a(A_SELH, 4)}, {a(RC, 4)}, {v(pt, 16)}",
          f"{M32} {v(pt, 16)}, {a(A_SELL, 4)}, {a(RA, 4)}, {v(pt, 16)}",
          f"{M32} {v(pt, 16)}, {a(A_SELL, 4)}, {a(RC, 4)}, {v(pt, 16)}"]
    dm = [f"{M32} {v(d0, 16)}, {a(DG, 4)}, {a(RD_, 4)}, {v(pt, 16)}",
          f"{M32} {v(pt, 16)}, {a(DG + 4, 4)}, {a(RD_, 4)}, {v(pt, 16)}"]
    cm = [f"{M16} {a(A_CACC, 4)}, {a(TF, 4)}, {a(RC, 4)}, {'0' if ks == 0 else a(A_CACC, 4)}",
          f"{M16} {a(A_CACC + 4, 4)}, {a(TF, 4)}, {a(RB, 4)}, {'0' if ks == 0 else a(A_CACC + 4, 4)}"]
    cv = []
    for p_, d in enumerate((d0, pt)):
        for k in range(8):
            cv.append(f"v_cvt_pk_bf16_f32 v{we(2 * p_ + (k >> 2), ks) + (k & 3)}, v{d + 2 * k}, v{d + 2 * k + 1}")
    tg = lambda lst: [l + f" ; @x:cs{st}" for l in lst]
    return r1, r2, r3, tg(pm), tg(dm), tg(cm), cv


def cpost():
    X = [V_CPK + r for r in range(4)]
    Y = [V_HP + r for r in range(4)]
    o = [f"v_lshlrev_b32 v{V_B1}, 16, v{V_B1} ; @r:ldS1b",
         f"v_and_b32 v{V_B2}, s32, v{V_B2} ; @r:ldS1b",
         f"v_lshlrev_b32 v{V_B2}, 16, v{V_B2}"]
    for fn in (lambda r: f"v_accvgpr_read_b32 v{X[r]}, {a(A_CACC + 4 + r)}",
               lambda r: f"v_accvgpr_read_b32 v{Y[r]}, {a(A_CACC + r)}",
               lambda r: f"v_sub_f32 v{X[r]}, v{X[r]}, v{Y[r]}",
               lambda r: f"v_add_f32 v{X[r]}, v{X[r]}, v{V_B1}",
               lambda r: f"v_mul_f32 v{X[r]}, s33, v{X[r]}",
               lambda r: f"v_cvt_pk_bf16_f32 v{Y[r]}, v{X[r]}, v{X[r]}",
               lambda r: f"v_and_b32 v{Y[r]}, 0xffff0000, v{Y[r]}",
               lambda r: f"v_sub_f32 v{Y[r]}, v{X[r]}, v{Y[r]}",
               lambda r: f"v_cvt_pk_bf16_f32 v{X[r]}, v{X[r]}, v{Y[r]}"):
        o += [fn(r) for r in range(4)]
    return o


def vwait(tag):
    return f"s_waitcnt vmcnt({vmcount(tag)})"


def p_g(sig):
    b, blk = sig & 3, sig >> 2
    f = A_F + 32 * (sig & 1)
    ac = ACA[sig & 1]
    fr = [f"ds_read_b128 {a(f + 4 * ks, 4)}, v{V_FA + 8 * (b >> 1) + ks} offset:{(b & 1) * 32768 + (blk & 3) * 8192}" for ks in range(8)]
    gm = [f"{M32} {v(ac, 16)}, {v(we(b, ks), 4)}, {a(f + 4 * ks, 4)}, {'0' if ks == 0 else v(ac, 16)}" for ks in range(8)]
    gm.append(f"{M32} {v(ac, 16)}, {v(V_CPK, 4)}, {a(ONES[b], 4)}, {v(ac, 16)}")
    return fr, gm


KS = [kstep(ks) for ks in range(8)]
PREP = [vwait("S0a")] + KS[0][0] + KS[1][0] + [vwait("S0b")] + KS[0][1] + KS[1][1]
PREP += ["s_waitcnt lgkmcnt(15) ; @fence", "s_barrier ; @fence @w:tab"] + sstamp() + KS[0][2] + KS[1][2]
left = []
for ks in range(8):
    r1, r2, r3, pm, dm, cm, cv = KS[ks]
    st = ks >> 1
    pre = []
    nxt = []
    if ks + 2 < 8:
        n = KS[ks + 2]
        if ks % 2 == 0:
            pre = [vwait(f"S{st + 1}b").replace(f"@w:ldS{st + 1}b", f"@w:ldS{st + 1}a @w:ldS{st + 1}b")]
        nxt = n[0] + n[1] + n[2]
    if ks in (2, 4):
        pre += [f"s_barrier ; @fence @y:cs{st - 1}"] + sstamp()
    if ks == 7:
        pre += sbarrier("H0", extra="@y:cs2") + sstamp()
        nxt = p_g(0)[0]
    if ks < 2:
        vmo = take(8)
    elif ks < 2 + (DIST + 1) // 2:
        vmo = hist_load(2 * (ks - 2)) + (hist_load(2 * (ks - 2) + 1) if 2 * (ks - 2) + 1 < DIST else [])
    else:
        vmo = []
    o = pm + dm + cm + mix(left, nxt, 1)
    PREP += pre + mixg(o, vmo, 3, 1)
    left = cv
left += cpost()


def boost(l, p=1000):
    return l + (" " if ";" in l else " ; ") + f"@p:{p}"


def p_e(p):
    ex = [f"v_exp_f32 v{ACB + r}, v{ACA[p & 1] + r}" for r in range(16)]
    ex.append(boost(f"{M32} {v(ACB, 16)}, {a(A_HALF, 4)}, {a(ONES[0], 4)}, {v(ACB, 16)}"))
    return ex


def p_r(p):
    mvr = [f"ds_read_b32 v{V_MV}, v{V_MVA} offset:{(p & 3) * 1024 + (p >> 2) * 128}"]
    rc = []
    for k in range(8):
        rc.append(f"v_rcp_f32 v{ACB + 2 * k}, v{ACB + 2 * k}")
        rc.append(f"v_rcp_f32 v{ACB + 2 * k + 1}, v{ACB + 2 * k + 1}")
        rc.append(f"v_cvt_pk_bf16_f32 v{V_HP + k}, v{ACB + 2 * k}, v{ACB + 2 * k + 1}")
        if k % 4 == 3:
            u = k // 4
            rc.append(boost(f"{M16} {v(V_SC, 4)}, {a(A_W2 + 4 * u, 4)}, {v(V_HP + 4 * u, 4)}, {v(V_B2, 4) if u == 0 else v(V_SC, 4)}"))
    fin = [f"v_mul_f32 v{V_MV}, v{V_MV}, v{V_SC}",
           f"v_cvt_pk_bf16_f32 v{V_MV}, v{V_MV}, v{V_MV}",
           f"ds_write_b16 v{V_SWA}, v{V_MV} offset:{(p & 3) * 1024 + ((p >> 2) & 3) * 256} ; @def:sw"]
    return mvr, rc, fin


def p_g2(p):
    b, pb = p & 3, p >> 2
    ap, trr = A_APK + 4 * (p & 1), A_TR + 8 * (p & 1)
    g2r = [f"ds_read_b128 {a(ap, 4)}, v{V_SRA} offset:{b * 1024 + (pb & 3) * 256}"]
    for t in range(2):
        for h2 in range(2):
            g2r.append(f"ds_read_b64_tr_b16 {a(trr + 4 * t + 2 * h2, 2)}, v{V_TA + 2 * (b >> 1) + t} offset:{(b & 1) * 32768 + (pb & 3) * 8192 + 512 * h2}")
    g2 = [f"{M16} {a(A_O + 8 * b + 4 * t, 4)}, {a(ap, 4)}, {a(trr + 4 * t, 4)}, {'0' if p < 4 else a(A_O + 8 * b + 4 * t, 4)}" for t in range(2)]
    return g2r, g2


def store(b):
    t = ACX
    o = [f"v_accvgpr_read_b32 v{t + r}, {a(A_O + 8 * b + r)}" for r in range(8)]
    for q in range(2):
        o += [f"v_add_f32 v{t + 4 * q}, v{t + 4 * q}, v{t + 4 * q + 1}", f"v_add_f32 v{t + 4 * q + 2}, v{t + 4 * q + 2}, v{t + 4 * q + 3}",
              f"v_add_f32 v{t + 4 * q}, v{t + 4 * q}, v{t + 4 * q + 2}"]
    o += [f"v_cndmask_b32 v{t + 8 + b}, v{t}, v{t + 4}, s[64:65]",
          f"v_cvt_pk_bf16_f32 v{t + 8 + b}, v{t + 8 + b}, v{t + 8 + b}",
          vm(f"buffer_store_short v{t + 8 + b}, v{V_OA}, {s(SRD_O, 4)}, 0 offen offset:{256 * b}", "st")]
    return o


def step(sig, last=15, pre=()):
    ok = lambda p: 0 <= p <= last
    o = sbarrier(f"H{sig + 1}" if ok(sig + 1) else None, extra="@use:sw" + (" @y:cs3" if sig == 1 else ""))
    if sig % 2 == 0:
        o += sstamp()
    gm = p_g(sig)[1] if ok(sig) else []
    fr = p_g(sig + 1)[0] if ok(sig + 1) else []
    ex = p_e(sig - 1) if ok(sig - 1) else []
    mvr, rc, fin = p_r(sig - 2) if ok(sig - 2) else ([], [], [])
    g2r, g2 = p_g2(sig - 3) if ok(sig - 3) else ([], [])
    ld = hist_load(sig + DIST) if ok(sig + DIST) else [[]]
    out = store((sig - 3) & 3) if (last == 15 and sig - 3 >= 12) else []
    o += list(pre) + gm + mvr + g2r + ld[0] + fr[:3] + g2 + mix(mixg(rc, ld[1:], 8, 6) + fin + ex, fr[3:], 5, 6) + out
    return o


nbr = [f"v_mov_b32 v{V_MV}, {NBX}", f"ds_read_b128 {v(V_HP + 4, 4)}, v{V_MV}",
       f"v_max3_u32 v{V_HP + 4}, v{V_HP + 4}, v{V_HP + 5}, v{V_HP + 6}", f"v_max_u32 v{V_HP + 4}, v{V_HP + 4}, v{V_HP + 7}",
       f"v_readfirstlane_b32 s13, v{V_HP + 4}", "s_mov_b32 s64, 0xffff0000", "s_mov_b32 s65, 0xffff0000"]
SX = 16 - DIST
assert SX >= 7
HEAD = PREP + step(0, pre=left + nbr)
for sig in range(1, SX):
    HEAD += step(sig)
emit_sched(HEAD, "head", trace=VERB > 3)
A("s_waitcnt lgkmcnt(0)")
A("s_cmp_eq_u32 s13, 3")
A("s_cbranch_scc1 L_wrap")
A("L_tail:")
vm_end = list(vm_log)
TAIL = []
for sig in range(SX, 19):
    TAIL += step(sig)
emit_sched(TAIL, "tail", trace=VERB == 3)
if STAMP:
    A("s_waitcnt vmcnt(0)")
    stamp(True)
    stamp(True)
    nstamp[0] -= 1
    A("s_lshl2_add_u32 s7, s2, s5")
    A("s_lshl_b32 s7, s7, 8")
    A("v_mbcnt_lo_u32_b32 v20, -1, 0")
    A("v_mbcnt_hi_u32_b32 v20, -1, v20")
    A("v_lshl_add_u32 v20, v20, 2, s7")
    A(f"global_store_dword v20, v{V_ST}, s[84:85]")
    print("nstamps", nstamp[0])
A("L_end:")
A("s_endpgm")
A("L_codeend:")
A("L_wrap:")
STAMP = 0
vm_log[:] = vm_end
WR = []
for sig in range(SX, SX + 16):
    WR += step(sig, last=31)
emit_sched(WR, "wrap")
A("s_waitcnt lgkmcnt(0)")
A(f"v_add_u32 v{V_MVA}, 0x200, v{V_MVA}")
A("s_branch L_tail")

auto_lgkm(A)
npad = A.pad(verbose=VERB > 1)

ref = open("cdna_kernels/%s.s.ref" % NAME).read().split("\n")
head_ = [l for l in ref if l.startswith(";") and "@launch" not in l and "Override" not in l and "grid=ceil" not in l]
out = "\n".join(head_) + "\n"
out += f"; @launch grid=(256,1,1) block=(256,1,1) lds={LDS_BYTES}\n"
out += '.amdgcn_target "amdgcn-amd-amdhsa--gfx950"\n.text\n'
out += f".globl {NAME}_kernel\n.p2align 8\n.type {NAME}_kernel,@function\n"
out += "\n".join(l.split(";")[0].rstrip() for l in A.text().split("\n")) + "\n"
out += f""".section .rodata,"a"
.p2align 6
.amdhsa_kernel {NAME}_kernel
  .amdhsa_next_free_vgpr {NVG + NAG}
  .amdhsa_next_free_sgpr 102
  .amdhsa_accum_offset {NVG}
  .amdhsa_group_segment_fixed_size 0
  .amdhsa_kernarg_size 80
  .amdhsa_user_sgpr_count 2
  .amdhsa_user_sgpr_kernarg_segment_ptr 1
  .amdhsa_system_sgpr_workgroup_id_x 1
.end_amdhsa_kernel
"""
open(sys.argv[1], "w").write(out)
print(f"wrote {sys.argv[1]}: {len(A.ins)} lines, {npad} pad states")
```

```python
import re

TRANS = ("v_exp_f32", "v_rcp_f32", "v_log_f32", "v_rsq_f32", "v_sqrt_f32", "v_sin_f32", "v_cos_f32")
REG_RE = re.compile(r"^(-)?([vas])(?:(\d+)|\[(\d+):(\d+)\])$")


def regs_of(tok):
    tok = tok.strip()
    if tok in ("vcc",):
        return {"vcc"}
    if tok in ("exec",):
        return {"exec"}
    if tok == "m0":
        return {"m0"}
    m = REG_RE.match(tok)
    if not m:
        return set()
    f = m.group(2)
    if m.group(3) is not None:
        return {f + m.group(3)}
    return {f + str(i) for i in range(int(m.group(4)), int(m.group(5)) + 1)}


class Ins:
    def __init__(self, text):
        self.text = text
        t = text.split(";")[0].strip()
        self.label = None
        self.mn = ""
        self.reads = set()
        self.writes = set()
        self.kind = "other"
        self.srcC = set()
        self.srcAB = set()
        self.passes = 0
        self.states = 1
        self.target = None
        self.dpp = False
        if t.endswith(":"):
            self.label = t[:-1]
            self.kind = "label"
            self.states = 0
            return
        if t.startswith(".") or not t:
            self.kind = "directive"
            self.states = 0
            return
        parts = t.split(None, 1)
        mn = parts[0]
        self.mn = mn
        rest = parts[1] if len(parts) > 1 else ""
        ops = []
        depth = 0
        cur = ""
        for ch in rest:
            if ch == "[":
                depth += 1
            if ch == "]":
                depth -= 1
            if ch == "," and depth == 0:
                ops.append(cur.strip())
                cur = ""
            else:
                cur += ch
        if cur.strip():
            ops.append(cur.strip())
        mods = ""
        if ops:
            lp = ops[-1].split(None, 1)
            ops[-1] = lp[0]
            mods = lp[1] if len(lp) > 1 else ""
        self.ops = ops
        self.mods = mods
        R = [regs_of(o) for o in ops]
        if mn.startswith("v_mfma"):
            self.kind = "mfma"
            self.passes = 8 if "32x32" in mn else 4
            self.writes = R[0]
            self.srcAB = R[1] | R[2]
            self.srcC = R[3]
            self.reads = self.srcAB | self.srcC
        elif mn.startswith("v_"):
            self.kind = "trans" if mn.replace("_e32", "").replace("_e64", "") in TRANS else "valu"
            if "dpp" in mn or "quad_perm" in mods or "row_" in mods:
                self.dpp = True
            if mn.startswith(("v_addc_co", "v_add_co", "v_sub_co", "v_subb_co")):
                self.writes = R[0] | R[1]
                self.reads = set().union(*R[2:])
            elif mn.startswith("v_permlane"):
                self.writes = R[0] | R[1]
                self.reads = R[0] | R[1]
            elif mn.startswith(("v_fmac", "v_dot2c")):
                self.writes = R[0]
                self.reads = set().union(*R)
            else:
                self.writes = R[0]
                self.reads = set().union(*R[1:]) if len(R) > 1 else set()
                if self.dpp:
                    self.reads |= R[0]
        elif mn.startswith("ds_"):
            self.kind = "ds"
            if mn.startswith(("ds_read", "ds_bpermute", "ds_permute", "ds_swizzle")):
                self.writes = R[0]
                self.reads = set().union(*R[1:])
            else:
                self.reads = set().union(*R)
        elif mn.startswith(("buffer_", "global_")):
            self.kind = "vmem"
            is_lds = bool(re.search(r"\blds\b", mods)) or "_lds_" in mn
            self.lds = is_lds
            if "load" in mn and not is_lds:
                self.writes = R[0]
                self.reads = set().union(*R[1:])
            else:
                self.reads = set().union(*R)
                if is_lds:
                    self.reads |= {"m0"}
            self.wide_store = "store" in mn and ("x4" in mn or "x3" in mn)
            if self.wide_store:
                self.sdata = R[0] if mn.startswith("buffer_") else R[1]
        elif mn.startswith("s_"):
            self.kind = "salu"
            if mn == "s_nop":
                self.states = int(ops[0], 0) + 1
            elif mn.startswith(("s_branch", "s_cbranch")):
                self.kind = "branch"
                self.target = ops[0]
            elif mn in ("s_endpgm",):
                self.kind = "end"
            elif mn.startswith(("s_cmp", "s_waitcnt", "s_barrier", "s_setprio", "s_sleep")):
                self.reads = set().union(*R) if R else set()
            else:
                self.writes = R[0] if R else set()
                self.reads = set().union(*R[1:]) if len(R) > 1 else set()
        m = re.search(r"@use:(\S+)", text)
        self.use = (regs_of(m.group(1)) or {"#" + m.group(1)}) if m else set()
        m = re.search(r"@def:(\S+)", text)
        self.defs = {"#" + m.group(1)} if m else set()


def is_vec(r):
    return r[0] in "va" and r not in ("vcc",)


def required(P, C):
    need = 0
    pv = P.kind in ("valu", "trans")
    cv = C.kind in ("valu", "trans")
    if pv and C.kind == "mfma" and (P.writes & C.reads):
        need = max(need, 3 if P.kind == "trans" else 2)
    if P.kind == "mfma":
        D = P.writes
        if C.kind == "mfma":
            if D & C.srcAB:
                need = max(need, P.passes + 4)
            if D & C.srcC:
                if not (D == C.srcC and P.passes == C.passes):
                    need = max(need, P.passes + 2)
            if (D & C.writes) and not (D == C.srcC and P.passes == C.passes):
                need = max(need, P.passes + 2)
        elif cv or C.kind in ("ds", "vmem"):
            if D & (C.reads | C.writes):
                need = max(need, P.passes + 4)
        if (cv or C.kind in ("ds", "vmem")) and (P.srcC & C.writes):
            need = max(need, P.passes - 1)
    if P.kind == "trans" and C.kind == "valu" and (P.writes & C.reads):
        need = max(need, 1)
    if P.kind == "trans" and C.kind in ("ds", "vmem") and (P.writes & C.reads):
        need = max(need, 1)
    if pv:
        sw = {r for r in P.writes if not is_vec(r)}
        if sw:
            if cv and (sw & C.reads):
                need = max(need, 4 if C.mn.startswith(("v_readlane", "v_writelane")) else 2)
            if C.kind == "vmem" and (sw & C.reads):
                need = max(need, 5)
            if C.kind in ("salu", "branch") and (sw & C.reads):
                need = max(need, 1)
        vw = {r for r in P.writes if is_vec(r)}
        if vw:
            if C.mn.startswith(("v_readfirstlane", "v_readlane")) and (vw & C.reads):
                need = max(need, 1)
            if cv and (C.dpp or C.mn.startswith("v_permlane")) and (vw & C.reads):
                need = max(need, 2)
    if P.kind == "salu" and "m0" in P.writes and C.kind == "vmem" and "m0" in C.reads:
        need = max(need, 1)
    if P.kind == "vmem" and getattr(P, "wide_store", False) and (P.sdata & C.writes):
        need = max(need, 2 if cv else 1)
    return need


MAXD = 14


class Asm:
    def __init__(self):
        self.ins = []

    def __call__(self, text):
        for line in text.strip().split("\n"):
            line = line.strip()
            if line:
                self.ins.append(Ins(line))

    def extend(self, lst):
        for l in lst:
            self(l)

    def _preds(self):
        lab = {x.label: i for i, x in enumerate(self.ins) if x.label}
        preds = [[] for _ in self.ins]
        for i, x in enumerate(self.ins):
            if x.kind == "end":
                continue
            if x.kind == "branch":
                preds[lab[x.target]].append(i)
                if x.mn == "s_branch":
                    continue
            if i + 1 < len(self.ins):
                preds[i + 1].append(i)
        return preds

    def pad(self, verbose=False):
        total = 0
        changed = True
        start = 0
        while changed:
            changed = False
            preds = self._preds()
            for i in range(start, len(self.ins)):
                C = self.ins[i]
                if C.kind in ("label", "directive"):
                    continue
                short = 0
                why = None
                stack = [(p, 0) for p in preds[i]]
                seen = {}
                while stack:
                    j, d = stack.pop()
                    if seen.get(j, 99) <= d:
                        continue
                    seen[j] = d
                    P = self.ins[j]
                    if P.kind not in ("label", "directive"):
                        n = required(P, C)
                        if n - d > short:
                            short = n - d
                            why = P
                    nd = d + P.states
                    if nd < MAXD:
                        for p in preds[j]:
                            stack.append((p, nd))
                if short > 0:
                    if verbose:
                        print(f"pad {short} before [{C.text}] due to [{why.text}]")
                    self.ins.insert(i, Ins(f"s_nop {short - 1}"))
                    total += short
                    changed = True
                    start = i
                    break
        return total

    def text(self):
        out = []
        for x in self.ins:
            if x.kind == "label":
                out.append(x.text)
            else:
                out.append("  " + x.text)
        return "\n".join(out) + "\n"


def interleave(*streams_with_weights):
    items = []
    for s in streams_with_weights:
        n = len(s)
        for k, x in enumerate(s):
            items.append(((k + 0.5) / n, len(items), x))
    items.sort(key=lambda t: (t[0], t[1]))
    return [x for _, _, x in items]


TRANS_LAT = 22
DS_LAT = 130
LDS_OCC = 0
TA_OCC = 0


def _cost(x):
    if x.kind == "trans":
        return 8
    if x.kind == "mfma":
        return 8
    if x.kind == "vmem":
        return (20 if " st" in x.text else 70) if "clump" in x.mn else 12
    if x.kind == "ds":
        return 14 if x.mn.startswith("ds_write_b128") else 5
    if x.kind == "valu":
        e32 = x.mn in ("v_mul_f32", "v_add_u32", "v_sub_f32", "v_and_b32", "v_xor_b32", "v_mov_b32", "v_lshlrev_b32",
                       "v_lshrrev_b32", "v_add_f32", "v_or_b32")
        return 4 if e32 else 5
    return 4


def _lat(P, C, raw):
    if not raw:
        if P.kind == "mfma" and (P.writes & C.writes) and C.kind != "mfma":
            return P.passes * 4 + 24
        if P.kind == "mfma" and (P.srcC & C.writes) and C.kind != "mfma":
            return P.passes * 4
        if P.kind == "ds" and (P.writes & C.writes):
            return 130
        return _cost(P)
    if P.kind == "mfma":
        if C.kind == "mfma" and P.writes == C.srcC and not (P.writes & C.srcAB):
            return P.passes * 4
        return P.passes * 4 + 24
    if P.kind == "ds":
        m = re.search(r"@lat:(\d+)", P.text)
        return int(m.group(1)) if m else DS_LAT
    if P.kind == "trans":
        return 28 if C.kind == "mfma" else TRANS_LAT
    if P.kind == "valu":
        if C.kind == "mfma" or C.dpp:
            return 14
        if any(not is_vec(r) for r in (P.writes & C.reads)):
            return 14 if C.kind != "vmem" else 26
        return _cost(P)
    return _cost(P)


def schedule(lines, prio_boost=None, ready0=None, mode="cp", trace=False):
    ins = [Ins(l) for l in lines]
    n = len(ins)
    tags = []
    for x in ins:
        t = x.text.split(";", 1)[1] if ";" in x.text else ""
        tags.append(t.split())
    succ = [[] for _ in range(n)]
    npred = [0] * n
    def edge(i, j, lat):
        succ[i].append((j, lat))
        npred[j] += 1
    for j in range(n):
        C = ins[j]
        tj = tags[j]
        rj = {t[3:] for t in tj if t.startswith("@r:")}
        wj = {t[3:] for t in tj if t.startswith("@w:")}
        fj = "@fence" in tj
        vj = "@vmw" in tj
        for i in range(j):
            P = ins[i]
            ti = tags[i]
            lat = None
            if P.writes & C.reads:
                lat = _lat(P, C, True)
            if (P.reads & C.writes) or (P.writes & C.writes):
                l2 = _lat(P, C, False)
                lat = l2 if lat is None else max(lat, l2)
            ri = {t[3:] for t in ti if t.startswith("@r:")}
            wi = {t[3:] for t in ti if t.startswith("@w:")}
            if {t[3:] for t in ti if t.startswith("@x:")} & {t[3:] for t in tj if t.startswith("@y:")}:
                lat = max(lat or 0, _cost(P))
            if (wi & (rj | wj)) or (ri & wj):
                lat = max(lat or 0, _cost(P))
            mem_i = P.kind in ("ds", "vmem") or "@fence" in ti or "@vmw" in ti
            mem_j = C.kind in ("ds", "vmem") or fj or vj
            if ("@fence" in ti and mem_j) or (fj and mem_i):
                slow = fj and P.kind == "ds" and ("lgkmcnt(0)" in C.text or (getattr(P, "defs", set()) & getattr(C, "use", set())))
                lat = max(lat or 0, 110 if slow else _cost(P))
            if (P.kind == "vmem" or "@vmw" in ti) and (C.kind == "vmem" or vj):
                lat = max(lat or 0, _cost(P))
            if P.kind == "salu" and C.kind == "salu" and not (P.mn.startswith("s_waitcnt") or C.mn.startswith("s_waitcnt")):
                lat = max(lat or 0, 4)
            if lat is not None:
                edge(i, j, lat)
    prio = [0] * n
    for i in range(n - 1, -1, -1):
        p = _cost(ins[i])
        for j, lat in succ[i]:
            p = max(p, lat + prio[j])
        prio[i] = p
    if mode == "order":
        for i in range(n):
            pos = i
            for t in tags[i]:
                if t.startswith("@o:"):
                    pos = float(t[3:])
            prio[i] = -pos + (100000 if ins[i].kind == "mfma" else 0)
    for i in range(n):
        for t in tags[i]:
            if t.startswith("@p:"):
                prio[i] += int(t[3:])
    ready = [0] * n
    for i in range(n):
        for t in tags[i]:
            if t.startswith("@after:"):
                ready[i] = int(t[7:])
        if ready0:
            for r in ins[i].reads | ins[i].writes:
                if r in ready0:
                    ready[i] = max(ready[i], ready0[r])
    rslot = [0] * n
    avail = [i for i in range(n) if npred[i] == 0]
    t = 0
    pipe = 0
    ldsp = 0
    tap = 0
    order = []
    slot = 0
    while avail:
        def rt(i):
            r = ready[i]
            if ins[i].kind == "mfma":
                r = max(r, pipe)
            if ins[i].kind == "ds":
                r = max(r, ldsp)
            if ins[i].kind == "vmem":
                r = max(r, tap)
            return r
        cands = [i for i in avail if rt(i) <= t and rslot[i] <= slot]
        if cands:
            i = max(cands, key=lambda i: (prio[i], -i))
        else:
            i = min(avail, key=lambda i: (max(rt(i), t + 4 * max(0, rslot[i] - slot)), -prio[i]))
            t = max(rt(i), t + 4 * max(0, rslot[i] - slot))
            slot = max(slot, rslot[i])
        avail.remove(i)
        order.append(i)
        slot += 1
        if trace:
            print(f"{t:5d} {lines[i]}")
        if ins[i].kind == "mfma":
            pipe = t + ins[i].passes * 4
        if ins[i].kind == "ds":
            ldsp = t + LDS_OCC * ((13 if "write" in ins[i].mn else 4) if "b128" in ins[i].mn else 2)
        if ins[i].kind == "vmem" and "x4" in ins[i].mn:
            m_ = re.search(r"@occ:(\d+)", ins[i].text)
            tap = t + (int(m_.group(1)) if m_ else TA_OCC)
        for j, lat in succ[i]:
            ready[j] = max(ready[j], t + lat)
            rslot[j] = max(rslot[j], slot + required(ins[i], ins[j]))
            npred[j] -= 1
            if npred[j] == 0:
                avail.append(j)
        t += _cost(ins[i])
    return [lines[i] for i in order], t


def auto_lgkm(asm):
    out = []
    q = []
    for x in asm.ins:
        if x.kind in ("label", "directive"):
            out.append(x)
            continue
        if x.mn == "s_waitcnt":
            m = re.search(r"lgkmcnt\((\d+)\)", x.text)
            if m:
                k = int(m.group(1))
                if len(q) > k:
                    q = q[len(q) - k:] if k else []
            out.append(x)
            continue
        touched = x.reads | x.writes | getattr(x, 'use', set())
        idx = -1
        for i, d in enumerate(q):
            if d & touched:
                idx = i
        if idx >= 0:
            k = len(q) - 1 - idx
            k = min(k, 15)
            out.append(Ins(f"s_waitcnt lgkmcnt({k})"))
            q = q[len(q) - k:] if k else []
        if x.kind == "ds":
            q.append(set(x.writes) | x.defs)
        if x.kind in ("branch", "end") and any(q):
            tagok = "@pend" in x.text
            if not tagok:
                raise RuntimeError(f"pending ds reads at branch {x.text}: {[d for d in q if d]}")
        out.append(x)
    asm.ins = out
```

```python
import sys
import os

sys.path.insert(0, os.path.dirname(os.path.abspath(__file__)))
import asmlib
from asmlib import Asm, Ins, schedule, auto_lgkm

NAME = "standalone__sequential_behavior_din__recsys"
OPT = dict(a.split("=") if "=" in a else (a, "1") for a in sys.argv[2:])
STAMP = int(OPT.get("stamp", 0))
HIST_POL = OPT.get("hpol", "nt").replace("+", " ").replace("none", "")
VERB = int(OPT.get("v", 0))
asmlib.DS_LAT = int(OPT.get('dslat', 160))
asmlib.LDS_OCC = int(OPT.get('ldsocc', 3))
asmlib.TA_OCC = int(OPT.get('taocc', 100))
DIST = int(OPT.get("dist", 6))

N0 = 131072
LROW, LMSK = N0, N0 + 4096
TCP = N0 + 8192
W2C = TCP + 1024
DTAB = W2C + 1024
CPKB = DTAB + 8192
LDS_BYTES = CPKB + 4096
OOB = 0x100000

NVG = 256
V_EN = 0
V_FA = 8
V_TA = 16
V_CPK = 24
V_B2 = 28
V_SC = 32
V_MVAL = 36
V_APK = 40
V_HP = 44
V_MVA, V_ENA, V_K0, V_ST = 52, 53, 54, 55
V_DMA = 56
P_TRS, P_DG, P_TF, V_B1, P_CW = 32, 33, 35, 40, 41
P_XW, P_XR = 36, 36
AC = (64, 80, 96, 112)
WE = 128
A_F = 0
A_TR = 64
A_W2 = 128
A_O = 160
A_HALF = 192
ONES = {2: 194, 0: 196, 3: 198, 1: 200}
A_SELH, A_SELL = 204, 208
A_CACC = 212
V_CACC = 44
A_RT = 0
A_RS = 220
NAG = 256
SLOT = (0, 1, 2, 3)


def we(j, ks):
    return WE + 32 * j + 4 * ks


def v(i, n=1):
    return f"v{i}" if n == 1 else f"v[{i}:{i + n - 1}]"


def a(i, n=1):
    return f"a{i}" if n == 1 else f"a[{i}:{i + n - 1}]"


def s(i, n=1):
    return f"s{i}" if n == 1 else f"s[{i}:{i + n - 1}]"


M32 = "v_mfma_f32_32x32x16_bf16"
M16 = "v_mfma_f32_16x16x32_bf16"

A = Asm()
nstamp = [0]
CLUMPS = {}


pend = []


def stamp_lines(flush):
    out = []
    if flush:
        for k in pend:
            r = 86 + 4 * (k % 4)
            out += [f"v_writelane_b32 v{V_ST}, s{r}, {k}", f"v_writelane_b32 v{V_ST}, s{r + 2}, {32 + k}"]
        pend.clear()
    k = nstamp[0]
    nstamp[0] += 1
    assert len(pend) < 4
    pend.append(k)
    r = 86 + 4 * (k % 4)
    return out + [f"s_memrealtime s[{r}:{r + 1}]", f"s_memtime s[{r + 2}:{r + 3}]"]


def stamp(flush=False):
    if STAMP:
        if flush:
            A("s_waitcnt lgkmcnt(0)")
        A.extend(stamp_lines(flush))


def sstamp():
    if not STAMP or int(OPT.get("prof", 0)):
        return []
    k = nstamp[0]
    CLUMPS[f"st{k}"] = stamp_lines(True)
    return [f"buffer_clump_store v{V_ST}"]


vm_log = []


def vm(text, tag):
    vm_log.append(tag)
    return text


def vmcount(tag):
    last = max(i for i, t in enumerate(vm_log) if t == tag)
    n = len(vm_log) - 1 - last
    assert n <= 63
    return n


def emit_sched(lines, name, **kw):
    o, t = schedule(lines, mode="order", **kw)
    if VERB:
        print(f"region {name}: {len(o)} instrs, model {t} cycles")
    PROF = int(OPT.get("prof", 0))
    for li, l in enumerate(o):
        if PROF and name == "head" and li % PROF == 0 and nstamp[0] < 30:
            A.extend(stamp_lines(True))
            print("prof", nstamp[0] - 1, li, l[:60])
        if l.startswith(("buffer_clump", "ds_clump")):
            A.extend(CLUMPS[l.split(";")[1].split()[0]])
        else:
            A(l if ("@def" in l or "@use" in l) else l.split(";")[0])


def mix(main, extra, every, start=0):
    out = []
    extra = list(extra)
    for i, l in enumerate(main):
        if i >= start and (i - start) % every == 0 and extra:
            out.append(extra.pop(0))
        out.append(l)
    return out + extra


def mixg(main, groups, every, start=0):
    out = []
    groups = list(groups)
    for i, l in enumerate(main):
        if i >= start and (i - start) % every == 0 and groups:
            out += groups.pop(0)
        out.append(l)
    for g_ in groups:
        out += g_
    return out


def sbarrier(tag, lgkm0=False, extra=""):
    o = []
    w = (f"vmcnt({vmcount(tag)}) " if tag else "") + ("lgkmcnt(0)" if lgkm0 else "")
    if w:
        o.append(f"s_waitcnt {w}")
    return o + [f"s_barrier ; @fence {extra}"]


SRD_H, SRD_M, SRD_T, SRD_W1, SRD_W2, SRD_O = 36, 40, 44, 48, 56, 60
SOFF = {0: "s52", 1: "s53", 2: "s54", 3: "0"}
SQ = {0: "0", 1: "32", 2: "64", 3: "s55", 4: "s72", 5: "s73", 6: "s74", 7: "s11"}
SST = {0: "0", 1: "s6", 2: "s10", 3: "s15"}
ROW0 = (0, 256, 128, 384)


def w1_piece(st, k):
    out = []
    if k % 4 == 0:
        out.append(f"s_add_u32 m0, s14, {st * 8192 + (k >> 2) * 4096}")
    out.append(vm(f"buffer_load_dwordx4 v{V_DMA + k}, {s(SRD_W1, 4)}, {SST[st]} offen offset:{(k & 3) * 1024} lds", f"S{st}{'ab'[k >> 2]}"))
    return out


def hist_load(blk, half, lo=0, hi=4):
    en = V_EN + 4 * half
    out = [[f"ds_read_b128 {v(en, 4)}, v{V_ENA} offset:{blk * 128 + half * 16} ; @r:list"]] if lo == 0 else []
    for i in range(lo, hi):
        q = 4 * half + i
        g = [f"s_add_u32 m0, s14, {SLOT[blk & 3] * 8192 + half * 4096}"] if i == 0 else []
        g += [f"v_xad_u32 v{en + i}, v{V_K0}, {SQ[q]}, v{en + i}",
              vm(f"buffer_load_dwordx4 v{en + i}, {s(SRD_H, 4)}, {SOFF[i]} offen offset:{1024 * i} {HIST_POL} lds", f"H{blk}")]
        out.append(g)
    return out


L, G_, HI, N32, B0, B1, PI, GA, M2, M3, L3, VOOB, Q2 = (f"v{r}" for r in range(112, 125))
t0, t1, t2, t3 = "v108", "v109", "v110", "v111"
A(f"{NAME}_kernel:")
A("s_cmp_ge_u32 s2, 256")
A("s_cbranch_scc1 L_end")
A("s_load_dwordx16 s[16:31], s[0:1], 0")
if STAMP:
    A("s_load_dwordx2 s[84:85], s[0:1], 72")
SPIN = int(OPT.get("spin", 0))
if SPIN:
    A("s_memrealtime s[96:97]")
A("s_getpc_b64 s[12:13]")
A("L_pc:")
A(f"v_lshrrev_b32 {t0}, 6, v0")
A(f"v_and_b32 {L}, 63, v0")
A(f"v_readfirstlane_b32 s5, {t0}")
A(f"v_and_b32 {B0}, 1, v0")
A("s_bfe_u32 s7, s2, 0x50003")
A("s_lshl2_add_u32 s8, s7, s5")
A("s_lshl_b32 s7, s8, 8")
A(f"v_lshl_add_u32 {t0}, {B0}, 7, s7")
A(f"v_min_u32 {t0}, L_codeend-L_pc-4, {t0}")
A(vm(f"global_load_dword v128, {t0}, s[12:13]", "pf"))
stamp()
A(f"v_and_b32 {t1}, 7, v0")
A("s_lshl_b32 s7, s8, 10")
A(f"v_lshl_add_u32 {t1}, {t1}, 7, s7")
A(f"v_and_b32 {L3}, 3, v0")
A("s_lshl_b32 s14, s5, 15")
for r, n in ((SRD_M, 400), (SRD_T, 1024), (SRD_W1, 131072)):
    A(f"s_mov_b32 s{r + 2}, {n}")
    A(f"s_mov_b32 s{r + 3}, 0x20000")
A(f"v_lshrrev_b32 {t2}, 2, {L}")
A(f"v_lshlrev_b32 {t2}, 8, {t2}")
A(f"v_lshl_add_u32 {t2}, {L3}, 4, {t2}")
A("s_lshl_b32 s80, s5, 6")
A(f"v_add_u32 v{V_DMA}, s80, {t2}")
for k in range(1, 8):
    A(f"v_add_u32 v{V_DMA + k}, {ROW0[k >> 1] * 256 + (k & 1) * 4096 - (k & 3) * 1024}, v{V_DMA}")
A("s_lshl_b32 s7, s5, 8")
A(f"v_lshl_add_u32 {t2}, {L}, 2, s7")
A(f"v_lshlrev_b32 {t3}, 3, {L}")
A("s_lshl2_add_u32 s4, s2, s5")
A("s_mul_i32 s8, s4, 400")
A("s_lshl_b32 s9, s2, 10")
A("s_movk_i32 s6, 8192")
A("s_movk_i32 s10, 16384")
A("s_movk_i32 s15, 24576")
A(f"s_add_u32 m0, s7, {TCP}")
A("s_waitcnt lgkmcnt(0)")
A(vm(f"global_load_dword v129, {t1}, s[22:23]", "pf"))
if int(OPT.get("tlb", 0)):
    A("s_lshl2_add_u32 s7, s2, s5")
    A("s_mul_i32 s7, s7, 51200")
    A("v_mov_b32 v168, s7")
    A(vm("global_load_dword v169, v168, s[18:19] nt", "pf"))
    A("v_mov_b32 v170, s9")
    A(vm("global_load_dword v171, v170, s[30:31] nt", "pf"))
A(f"s_add_u32 s{SRD_M}, s20, s8")
A(f"s_addc_u32 s{SRD_M + 1}, s21, 0")
A(f"s_add_u32 s{SRD_T}, s16, s9")
A(f"s_addc_u32 s{SRD_T + 1}, s17, 0")
A(vm(f"buffer_load_dword v132, {t2}, {s(SRD_T, 4)}, 0 offen", "sm"))
A(vm(f"buffer_load_dwordx2 v[130:131], {t3}, {s(SRD_M, 4)}, 0 offen", "sm"))
A(f"s_mov_b32 s{SRD_W1}, s22")
A(f"s_mov_b32 s{SRD_W1 + 1}, s23")
A(vm(f"buffer_load_dword {t2}, {s(SRD_T, 4)}, 0 offen lds", "sm"))
A(f"s_mov_b32 m0, {W2C}")
A(f"v_and_b32 {t1}, 15, {L}")
A(f"v_lshlrev_b32 {t1}, 4, {t1}")
A(vm(f"global_load_lds_dwordx4 {t1}, s[26:27]", "sm"))
pieces = [(st, k) for st in range(4) for k in range(8)]
NPRE = int(OPT.get("npre", 10))
stamp()


def take(n):
    global pieces
    r = [w1_piece(st, k) for st, k in pieces[:n]]
    pieces = pieces[n:]
    return r


u0, u1, u2 = "v125", "v126", "v127"
CB = f"""v_lshrrev_b32 {HI}, 5, {L}
v_bfe_u32 {B1}, {L}, 1, 1
v_bfe_u32 {GA}, {L}, 4, 1
v_bfe_u32 {M2}, {L}, 2, 1
v_bfe_u32 {M3}, {L}, 3, 1
v_bfe_u32 {Q2}, {L}, 2, 2
v_lshrrev_b32 {G_}, 4, {L}
v_and_b32 {N32}, 31, {L}
v_and_b32 {PI}, 0x13, {L}
v_lshl_or_b32 {PI}, {M2}, 3, {PI}
v_lshl_or_b32 {PI}, {M3}, 2, {PI}
v_cmp_eq_u32 s[76:77], {M2}, {GA}
v_cmp_eq_u32 s[78:79], {M2}, {HI}
v_mov_b32 {VOOB}, {OOB}
s_mov_b32 s33, 0xbfb8aa3b
v_mov_b32 v136, 0
v_mov_b32 v137, 0
v_mov_b32 v138, 0
v_mov_b32 v139, 0
v_mov_b32 v140, 2.0
v_mov_b32 v141, 2.0
v_mov_b32 v142, 2.0
v_mov_b32 v143, 2.0
s_lshl_b32 s75, s5, 10
s_add_u32 s75, s75, {LROW}
s_lshl_b32 s81, s5, 11
s_add_u32 s81, s81, {DTAB}
v_lshl_add_u32 {t0}, {L}, 4, s75
v_lshl_add_u32 {t1}, {L}, 4, s81
ds_write_b128 {t1}, v[136:139]
ds_write_b128 {t1}, v[136:139] offset:1024
ds_write_b128 {t0}, v[140:143]
ds_write_b128 {t0}, v[136:139] offset:4096
v_lshl_add_u32 v133, {L}, 5, s81
v_lshl_add_u32 v133, {L3}, 2, v133
v_lshlrev_b32 {t0}, 5, {GA}
v_lshl_add_u32 {t0}, {B0}, 4, {t0}
v_lshl_add_u32 {t0}, {B1}, 3, {t0}
v_lshl_add_u32 {t0}, {Q2}, 6, {t0}
v_lshl_add_u32 {t0}, {HI}, 9, {t0}
v_add_u32 v{P_TRS}, s14, {t0}
v_and_b32 {t0}, 15, {PI}
v_lshlrev_b32 {t0}, 4, {t0}
v_add_u32 {t0}, {DTAB}, {t0}
v_add_u32 {t1}, s5, {GA}
v_and_b32 {t1}, 3, {t1}
v_xor_b32 {t2}, 2, {t1}
v_lshl_add_u32 {t1}, {t1}, 11, {t0}
v_lshl_add_u32 {t2}, {t2}, 11, {t0}
v_cndmask_b32 v{P_DG}, {VOOB}, {t1}, s[78:79]
v_cndmask_b32 v{P_DG + 1}, {VOOB}, {t2}, s[78:79]
v_add_u32 {t0}, s5, {L}
v_and_b32 {t0}, 3, {t0}
v_lshlrev_b32 {t0}, 8, {t0}
v_lshl_add_u32 {t0}, {HI}, 4, {t0}
v_add_u32 {t0}, {TCP}, {t0}
v_cndmask_b32 v{P_TF}, {VOOB}, {t0}, s[76:77]
v_lshlrev_b32 {t0}, 4, {B0}
v_mov_b32 {t1}, 0xffff
v_lshlrev_b32 {t0}, {t0}, {t1}
v_cndmask_b32 {t0}, 0, {t0}, s[78:79]
v_lshl_or_b32 {t1}, {M3}, 1, {B1}
v_and_b32 {t2}, 0xbfb9bfb9, {t0}
v_and_b32 {t3}, 0x3b2c3b2c, {t0}""".split("\n")
for x in range(4):
    CB.append(f"v_cmp_eq_u32 {s(64 + 2 * x, 2)}, {x}, {t1}")
for x in range(4):
    CB.append(f"v_cndmask_b32 v{144 + x}, 0, {t2}, {s(64 + 2 * x, 2)}")
    CB.append(f"v_cndmask_b32 v{148 + x}, 0, {t3}, {s(64 + 2 * x, 2)}")
for x in range(8):
    CB.append(f"v_accvgpr_write_b32 {a(A_SELH + x)}, v{144 + x}")
CB += f"""v_lshlrev_b32 v152, 10, {L}
v_add_u32 v153, 0x100, v152
v_add_u32 v154, 0x200, v152
v_add_u32 v155, 0x300, v152""".split("\n")

CC = f"""s_mul_i32 s8, s4, 51200
s_sub_u32 s8, s8, 3072
s_subb_u32 s7, 0, 0
s_add_u32 s{SRD_H}, s18, s8
s_addc_u32 s{SRD_H + 1}, s19, s7
s_lshl_b32 s8, s4, 8
s_add_u32 s{SRD_O}, s30, s8
s_addc_u32 s{SRD_O + 1}, s31, 0
s_mov_b32 s{SRD_H + 2}, {51200 + 3072}
s_mov_b32 s{SRD_H + 3}, 0x20000
s_mov_b32 s{SRD_O + 2}, 256
s_mov_b32 s{SRD_O + 3}, 0x20000""".split("\n")
for i_ in range(3):
    CC.append(f"s_movk_i32 {SOFF[i_]}, {3072 - 1024 * i_}")
for q in range(3, 8):
    CC.append(f"s_movk_i32 {SQ[q]}, {q << 5}")
CC += f"""v_lshl_add_u32 v{V_ENA}, {G_}, 5, s75
v_and_b32 {t0}, 15, {L}
v_xor_b32 {t0}, {GA}, {t0}
v_lshlrev_b32 v{V_K0}, 4, {t0}
v_and_b32 {u0}, 7, {L}
v_lshl_or_b32 {u1}, {u0}, 1, {M3}
v_xor_b32 {u1}, {u1}, {HI}
v_lshlrev_b32 {u1}, 4, {u1}
v_lshl_add_u32 {u1}, {u0}, 10, {u1}
v_lshrrev_b32 {u2}, 3, {N32}
v_lshl_add_u32 {u1}, {u2}, 8, {u1}
v_add_u32 v{V_FA}, s14, {u1}""".split("\n")
for ks in range(1, 8):
    CC.append(f"v_xor_b32 v{V_FA + ks}, {SQ[ks]}, v{V_FA}")
CC += f"""v_bfe_u32 {u0}, {L}, 2, 3
v_lshl_or_b32 {u1}, {u0}, 1, {HI}
v_xor_b32 {u1}, {u1}, {B1}
v_lshlrev_b32 {u1}, 4, {u1}
v_lshl_add_u32 {u1}, {u0}, 10, {u1}
v_lshl_add_u32 {u1}, {HI}, 8, {u1}
v_lshl_add_u32 {u1}, {B0}, 3, {u1}
v_add_u32 v{V_TA}, s14, {u1}""".split("\n")
for dt in range(1, 8):
    CC.append(f"v_xor_b32 v{V_TA + dt}, {SQ[dt]}, v{V_TA}")
CC += f"""v_lshlrev_b32 {u0}, 6, {B0}
v_lshl_add_u32 {u0}, {G_}, 4, {u0}
v_add_u32 v{V_MVA}, s75, {u0}
v_lshl_add_u32 v{P_XW}, {L}, 4, s14
s_mov_b32 s7, 0x1ffff
v_add_u32 v{P_XR + 1}, 0x18000, v{P_XW}
v_xor_b32 v{P_XR + 2}, 0x10000, v{P_XW}
v_add_u32 v{P_XR + 3}, 0x8000, v{P_XW}
v_and_b32 v{P_XR + 1}, s7, v{P_XR + 1}
v_and_b32 v{P_XR + 3}, s7, v{P_XR + 3}
s_lshl_b32 s7, s5, 9
s_add_u32 s7, s7, {CPKB}
v_lshl_add_u32 v{P_CW}, {N32}, 4, s7
v_cmp_eq_u32 vcc, {GA}, {B0}
s_add_u32 s7, s80, {W2C}
v_lshl_add_u32 {u0}, {HI}, 4, s7
v_cndmask_b32 v134, {VOOB}, {u0}, vcc
v_cmp_gt_u32 vcc, 32, {L}
v_mov_b32 {u0}, 0x3f803f80
v_mov_b32 {u1}, 0x3f003f00
v_cndmask_b32 {u0}, 0, {u0}, vcc
v_accvgpr_write_b32 {a(A_HALF)}, {u1}
v_accvgpr_write_b32 {a(A_HALF + 4)}, {u0}
v_accvgpr_write_b32 {a(A_HALF + 9)}, {u0}""".split("\n")
for r in (1, 2, 3, 5, 6, 7, 8, 10, 11):
    CC.append(f"v_accvgpr_write_b32 {a(A_HALF + r)}, 0")
CE = int(OPT.get("ce", 14))
first = take(2)
A.extend(first[0] + CB[:11] + first[1] + [f"v_lshl_add_u32 {u0}, {PI}, 1, s80", f"v_mov_b32 {u1}, 0",
         vm(f"global_load_ushort v{V_B1}, {u0}, s[24:25]", "sm2"), vm(f"global_load_ushort v{V_B2}, {u1}, s[28:29]", "sm2")] + CC[:12])
A.extend(mixg(CB[11:] + CC[12:], take(NPRE - 2), CE, 0))
stamp()

TP = """v_and_b32 v135, 0xffff0000, v132
v_lshlrev_b32 v132, 16, v132
v_mul_f32 v132, s33, v132
v_mul_f32 v135, s33, v135
v_cvt_pk_bf16_f32 v132, v132, v135
ds_write_b16 v133, v132
ds_write_b16_d16_hi v133, v132 offset:18 ; @def:tab""".split("\n")
RL = """v_lshlrev_b32 v156, 16, v130
v_and_b32 v157, 0xffff0000, v130
v_lshlrev_b32 v158, 16, v131
v_and_b32 v159, 0xffff0000, v131""".split("\n")
for j in range(4):
    RL.append(f"v_cmp_neq_f32 {s(64 + 2 * j, 2)}, 0, v{156 + j}")
RL += """v_mbcnt_lo_u32_b32 v148, s64, 0
s_bcnt1_i32_b64 s12, s[64:65]
v_mbcnt_hi_u32_b32 v148, s65, v148
s_bcnt1_i32_b64 s13, s[66:67]
v_mbcnt_lo_u32_b32 v148, s66, v148
s_bcnt1_i32_b64 s8, s[68:69]
v_mbcnt_hi_u32_b32 v148, s67, v148
s_bcnt1_i32_b64 s9, s[70:71]
v_mbcnt_lo_u32_b32 v148, s68, v148
s_add_u32 s12, s12, s13
v_mbcnt_hi_u32_b32 v148, s69, v148
s_add_u32 s8, s8, s9
v_mbcnt_lo_u32_b32 v148, s70, v148
s_add_u32 s13, s12, s8
v_mbcnt_hi_u32_b32 v148, s71, v148
s_add_u32 s8, s13, 127
v_addc_co_u32 v149, s[78:79], v148, 0, s[64:65]
s_lshr_b32 s8, s8, 8
v_addc_co_u32 v150, s[78:79], v149, 0, s[66:67]
s_add_u32 s8, s8, 2
v_addc_co_u32 v151, s[78:79], v150, 0, s[68:69]""".split("\n")
RL += [f"v_bfe_u32 v{144 + j}, v{148 + j}, 0, s8" for j in range(4)]
RL += [f"v_lshrrev_b32 v{148 + j}, s8, v{148 + j}" for j in range(4)]
RL += [f"v_lshl_add_u32 v{144 + j}, v{144 + j}, 7, s75" for j in range(4)]
RL += [f"v_lshl_add_u32 v{148 + j}, v{148 + j}, 2, v{144 + j}" for j in range(4)]
CLUMPS["lw"] = []
for j in range(4):
    CLUMPS["lw"] += [f"s_mov_b64 exec, {s(64 + 2 * j, 2)}", f"ds_write2st64_b32 v{148 + j}, v{152 + j}, v{156 + j} offset0:0 offset1:16"]
CLUMPS["lw"].append("s_mov_b64 exec, -1")
RL.append("ds_clump_write v[148:159], s[64:71]")
W2R = [f"ds_read_b128 {a(A_W2 + 4 * q, 4)}, v134 offset:{(4 - (q >> 1)) * 64 + 32 * (q & 1)}" for q in range(8)]


def kstep(ks):
    st, u = ks >> 1, ks & 1
    rs = A_RS + 12 * (ks % 3)
    rt = A_RT + 16 * ks
    RA, RC, RB, RD_, TF, DG = rt, rt + 4, rt + 8, rt + 12, rs, rs + 4
    base = st * 8192 + u * 1024
    tr = lambda reg, off, tag: [f"ds_read_b64_tr_b16 {a(reg + 2 * j2, 2)}, v{P_TRS} offset:{base + off + j2 * 256} ; @r:ldS{st}{tag} @r:reg{st} @x:rd{st} @def:rd{st}" for j2 in range(2)]
    r1 = tr(RA, 0, "a") + tr(RC, 2048, "a")
    r2 = tr(RD_, 6144, "b") + tr(RB, 4096, "b")
    r3 = [f"ds_read_b128 {a(DG + 4 * p_, 4)}, v{P_DG + p_} offset:{ks * 256} ; @r:tab" for p_ in range(2)]
    r3.append(f"ds_read_b128 {a(TF, 4)}, v{P_TF} offset:{32 * ks} ; @r:tab")
    pt = AC[2 + (ks & 1)]
    d0 = AC[ks & 1]
    pm = [f"{M32} {v(pt, 16)}, {a(A_SELH, 4)}, {a(RA, 4)}, 0",
          f"{M32} {v(pt, 16)}, {a(A_SELH, 4)}, {a(RC, 4)}, {v(pt, 16)}",
          f"{M32} {v(pt, 16)}, {a(A_SELL, 4)}, {a(RA, 4)}, {v(pt, 16)}",
          f"{M32} {v(pt, 16)}, {a(A_SELL, 4)}, {a(RC, 4)}, {v(pt, 16)}"]
    dm = [f"{M32} {v(d0, 16)}, {a(DG, 4)}, {a(RD_, 4)}, {v(pt, 16)}",
          f"{M32} {v(pt, 16)}, {a(DG + 4, 4)}, {a(RD_, 4)}, {v(pt, 16)}"]
    cm = [f"{M16} {v(V_CACC, 4)}, {a(TF, 4)}, {a(RC, 4)}, {'0' if ks == 0 else v(V_CACC, 4)}",
          f"{M16} {v(V_CACC + 4, 4)}, {a(TF, 4)}, {a(RB, 4)}, {'0' if ks == 0 else v(V_CACC + 4, 4)}"]
    cv = []
    for j in (1, 2, 3, 0):
        d = (d0, pt)[j >> 1] + 8 * (j & 1)
        for k in range(4):
            cv.append(f"v_cvt_pk_bf16_f32 v{we(j, ks) + k}, v{d + 2 * k}, v{d + 2 * k + 1}")
    return r1, r2, r3, pm, dm, cm, cv


XSLOT = {1: 2, 2: 3, 3: 3}


def xw(j, ks):
    return f"ds_write_b128 v{P_XW}, {v(we(j, ks), 4)} offset:{XSLOT[j] * 8192 + ks * 1024} ; @w:reg{XSLOT[j]} @def:xw"


def xr(j, ks):
    return f"ds_read_b128 {v(we(j, ks), 4)}, v{P_XR + j} offset:{XSLOT[j] * 8192 + ks * 1024} ; @def:xr"


def cpost():
    X = [V_CPK + r for r in range(4)]
    Y = [V_CACC + r for r in range(4)]
    Z = [V_CACC + 4 + r for r in range(4)]
    o = [f"v_lshlrev_b32 v{V_B1}, 16, v{V_B1} ; @r:ldS1b", f"v_mul_f32 v{V_B1}, s33, v{V_B1}"]
    for fn in (lambda r: f"v_sub_f32 v{Y[r]}, v{Z[r]}, v{Y[r]}",
               lambda r: f"v_fma_f32 v{Y[r]}, v{Y[r]}, s33, v{V_B1}",
               lambda r: f"v_and_b32 v{Z[r]}, 0xffff0000, v{Y[r]}",
               lambda r: f"v_sub_f32 v{Y[r]}, v{Y[r]}, v{Z[r]}",
               lambda r: f"v_cvt_pk_bf16_f32 v{X[r]}, v{Z[r]}, v{Y[r]}"):
        o += [fn(r) for r in range(4)]
    o.append(f"ds_write_b128 v{P_CW}, {v(V_CPK, 4)} ; @def:xw")
    o.append(f"ds_write_b128 v{P_CW}, {v(V_CPK, 4)} offset:2048 ; @def:xw")
    return o


def vwait(tag, extra=""):
    return f"s_waitcnt vmcnt({vmcount(tag)})"


def xbar():
    return ["s_nop 0 ; @fence @use:xw", "s_barrier ; @fence @use:xr"] + sstamp()


def boost(l, p=1000):
    return l + (" " if ";" in l else " ; ") + f"@p:{p}"


def f_reads(blk):
    f = A_F + 32 * (blk & 1)
    return [f"ds_read_b128 {a(f + 4 * ks, 4)}, v{V_FA + ks} offset:{SLOT[blk & 3] * 8192} ; @r:ldH{blk}" for ks in range(8)]


def p_g(sig):
    j, blk = sig & 3, sig >> 2
    f = A_F + 32 * (blk & 1)
    ac = AC[j]
    gm = [f"{M32} {v(ac, 16)}, {v(we(j, ks), 4)}, {a(f + 4 * ks, 4)}, {'0' if ks == 0 else v(ac, 16)}" for ks in range(8)]
    gm.append(f"{M32} {v(ac, 16)}, {v(V_CPK, 4)}, {a(ONES[j], 4)}, {v(ac, 16)}")
    return gm


KS = [kstep(ks) for ks in range(8)]
A(f"s_waitcnt vmcnt({vmcount('sm')})")
stamp(True)


def own(lst, st):
    return [[l + f" ; @y:rd{st} @use:rd{st}" if l.startswith("buffer") else l for l in g] for g in lst]


def trs(st):
    return [vwait(f"S{st}a")] + KS[2 * st][0] + KS[2 * st + 1][0] + [vwait(f"S{st}b")] + KS[2 * st][1] + KS[2 * st + 1][1]


def comp(ks):
    r1, r2, r3, pm, dm, cm, cv = KS[ks]
    return pm + dm + cm


def hot(groups):
    return [boost(l, 200000) for g in groups for l in g]


WOCC = int(OPT.get("wocc", 60))
GATE = int(OPT.get("gate", 8))


def wburst(n, last=False):
    o = [l + f" @occ:{WOCC}" if l.startswith("buffer") else l for l in hot(take(n))]
    if last:
        o[-1] += " @x:w1done"
    return o


def gated(ks):
    c = comp(ks)
    if ks >= GATE:
        c[0] += " ; @y:w1done"
    return c


PREP = wburst(2) + TP + trs(0) + ["s_barrier ; @fence @w:tab @use:tab"] + sstamp() + KS[0][2] + KS[1][2]
PREP += wburst(8) + RL + W2R + trs(1) + wburst(8) + trs(2) + wburst(4, True)
assert not pieces
PREP += hot(own(hist_load(0, 0), 0)) + trs(3) + hot(hist_load(0, 1) + own(hist_load(1, 0), 1) + hist_load(1, 1))
PREP += gated(0) + gated(1) + KS[2][2] + KS[0][6]
for ks in range(2, 8):
    PREP += gated(ks) + (KS[ks + 1][2] if ks < 7 else []) + mix(KS[ks - 1][6], [xw(1, ks - 2), xw(2, ks - 2)], 8, 1)
left = KS[7][6]
b2l = [f"v_lshlrev_b32 v{V_B2}, 16, v{V_B2} ; @r:ldS1b"] + [f"v_mov_b32 v{V_B2 + r}, v{V_B2}" for r in (1, 2, 3)]
PREP += [xw(1, 6), xw(2, 6)] + left[:4] + [xw(1, 7)] + left[4:8] + [xw(2, 7)] + [vwait("H0")] + mix(left[8:] + cpost(), f_reads(0), 3)
PREP += xbar() + b2l


def p_e(p):
    c = AC[p & 3]
    ex = [f"v_exp_f32 v{c + r}, v{c + r}" for r in range(16)]
    ex.append(boost(f"{M32} {v(c, 16)}, {a(A_HALF, 4)}, {a(ONES[0], 4)}, {v(c, 16)}"))
    return ex


def p_r(p):
    rc = []
    j = p & 3
    c = AC[j]
    for k in range(8):
        rc.append(f"v_rcp_f32 v{c + 2 * k}, v{c + 2 * k}")
        rc.append(f"v_rcp_f32 v{c + 2 * k + 1}, v{c + 2 * k + 1}")
        rc.append(f"v_cvt_pk_bf16_f32 v{V_HP + k}, v{c + 2 * k}, v{c + 2 * k + 1}")
        if k % 4 == 3:
            u = k // 4
            q = 2 * j + u
            rc.append(boost(f"{M16} {v(V_SC, 4)}, {v(V_HP + 4 * u, 4)}, {a(A_W2 + 4 * q, 4)}, {v(V_B2, 4) if q == 0 else v(V_SC, 4)}"))
    return rc


def tr_reads(blk):
    t = A_TR + 32 * (blk & 1)
    return [f"ds_read_b64_tr_b16 {a(t + 4 * dt + 2 * h2, 2)}, v{V_TA + dt} offset:{SLOT[blk & 3] * 8192 + 512 * h2} ; @r:ldH{blk}"
            for dt in range(8) for h2 in range(2)]


def fin(blk):
    o = [f"v_mul_f32 v{V_SC + r}, v{V_SC + r}, v{V_MVAL + r}" for r in range(4)]
    o.append(f"v_cvt_pk_bf16_f32 v{V_APK}, v{V_SC}, v{V_SC + 1}")
    o.append(f"v_cvt_pk_bf16_f32 v{V_APK + 1}, v{V_SC + 2}, v{V_SC + 3}")
    o.append(f"v_mov_b32_dpp v{V_APK + 2}, v{V_APK} quad_perm:[1,0,3,2] row_mask:0xf bank_mask:0xf")
    o.append(f"v_mov_b32_dpp v{V_APK + 3}, v{V_APK + 1} quad_perm:[1,0,3,2] row_mask:0xf bank_mask:0xf")
    t = A_TR + 32 * (blk & 1)
    g2 = [f"{M16} {a(A_O + 4 * dt, 4)}, {v(V_APK, 4)}, {a(t + 4 * dt, 4)}, {'0' if blk == 0 else a(A_O + 4 * dt, 4)}" for dt in range(8)]
    return o, g2


FJ = int(OPT.get('fj', 3))
FAST = int(OPT.get('fast', 1))


def step(sig, nb=4):
    last = 4 * nb - 1
    ok = lambda p: 0 <= p <= last
    j, blk = sig & 3, sig >> 2
    o = []
    x = []
    if sig == 0:
        x = [xr(1, k) for k in range(8)] + [f"ds_read_b32 v{V_CPK + j_}, v{P_CW} offset:{(4 - j_) * 512 + 4 * j_}" for j_ in (1, 2, 3)]
        x += [xr(2, k) for k in range(8)]
        o += x
        x = []
    elif sig == 1:
        o += xbar()
        x = [xw(3, k) for k in range(8)]
    elif sig == 2:
        o += xbar()
        x = [xr(3, k) for k in range(8)]
    elif sig == 4 - FAST:
        o += xbar()
    elif j == 0 and sig:
        o += sstamp()
    gm = p_g(sig) if ok(sig) else []
    ex = p_e(sig - 1) if ok(sig - 1) else []
    rc = p_r(sig - 2) if ok(sig - 2) else []
    ds = list(x)
    if ok(sig):
        tcut = {1: (0, 4, 8, 12, 16), 2: (0, 6, 12, 14, 16), 3: (0, 6, 11, 16, 16)}[FJ]
        ds += tr_reads(blk)[tcut[j]:tcut[j + 1]]
        if blk + 1 < nb and j >= FJ:
            if j == FJ:
                o.append(vwait(f"H{blk + 1}"))
            cut = {1: (0, 0, 3, 6, 8), 2: (0, 0, 0, 5, 8), 3: (0, 0, 0, 0, 8)}[FJ]
            ds = f_reads(blk + 1)[cut[j]:cut[j + 1]] + ds
        if j == 3:
            ds.append(f"ds_read_b128 {v(V_MVAL, 4)}, v{V_MVA} offset:{4096 + blk * 128}")
    fv, g2 = fin(blk - 1) if (j == 1 and blk >= 1) else ([], [])
    ld = []
    if FAST:
        B = (sig + 9) >> 2
        jj = (sig + 9) & 3
        if sig in (1, 2):
            ld = hist_load(2, sig - 1)
        elif sig >= 3 and B < nb:
            ld = hist_load(B, jj >> 1, 2 * (jj & 1), 2 * (jj & 1) + 2)
    elif blk + 2 < nb:
        ld = hist_load(blk + 2, j >> 1, 2 * (j & 1), 2 * (j & 1) + 2) if sig > 1 else (hist_load(2, 0) if sig == 1 else [])
    va = mixg(rc + ex[:6] + fv + ex[6:], ld, 12, 2)
    o += gm + mix(va, ds, max(1, min(5, len(va) // max(1, len(ds)))), 0) + g2
    return o


HEAD = list(PREP)
SX = 8 - FAST
for sig in range(0, SX):
    HEAD += step(sig)
emit_sched(HEAD, "head", trace=VERB > 3)
A("s_waitcnt lgkmcnt(0)")
A("s_cmp_gt_u32 s13, 128")
A("s_cbranch_scc1 L_wrap")
A("L_tail:")
vm_end = list(vm_log)
TAIL = []
for sig in range(SX, 18):
    TAIL += step(sig)
TAIL += ["v_mbcnt_lo_u32_b32 v66, -1, 0", "v_mbcnt_hi_u32_b32 v66, -1, v66", "v_lshlrev_b32 v66, 1, v66"]
emit_sched(TAIL, "tail", trace=VERB == 3)
for g in range(4):
    A(f"s_mov_b32 exec_lo, {hex(0xffff << (16 * g) if g < 2 else 0)}")
    A(f"s_mov_b32 exec_hi, {hex(0xffff << (16 * (g - 2)) if g >= 2 else 0)}")
    A(f"v_accvgpr_read_b32 v64, {a(A_O + 4 * g)}")
    A(f"v_accvgpr_read_b32 v65, {a(A_O + 4 * (g + 4))}")
A("s_mov_b64 exec, -1")
A("v_cvt_pk_bf16_f32 v64, v64, v65")
A(f"buffer_store_short v64, v66, {s(SRD_O, 4)}, 0 offen")
A(f"buffer_store_short_d16_hi v64, v66, {s(SRD_O, 4)}, 0 offen offset:128")
if STAMP:
    A("s_waitcnt vmcnt(0)")
    stamp(True)
    stamp(True)
    nstamp[0] -= 1
    A("s_lshl2_add_u32 s7, s2, s5")
    A("s_lshl_b32 s7, s7, 8")
    A("v_mbcnt_lo_u32_b32 v20, -1, 0")
    A("v_mbcnt_hi_u32_b32 v20, -1, v20")
    A("v_lshl_add_u32 v20, v20, 2, s7")
    A(f"global_store_dword v20, v{V_ST}, s[84:85]")
    print("nstamps", nstamp[0])
if SPIN:
    A("L_spin:")
    A("s_memrealtime s[98:99]")
    A("s_waitcnt lgkmcnt(0)")
    A("s_sub_u32 s98, s98, s96")
    A(f"s_cmp_lt_u32 s98, {SPIN}")
    A("s_cbranch_scc1 L_spin")
A("L_end:")
A("s_endpgm")
A("L_codeend:")
A("L_wrap:")
STAMP = 0
vm_log[:] = vm_end
WR = []
for sig in range(SX, SX + 16):
    WR += step(sig, nb=8)
emit_sched(WR, "wrap")
A("s_waitcnt lgkmcnt(0)")
A(f"v_add_u32 v{V_MVA}, 0x200, v{V_MVA}")
A("s_branch L_tail")

auto_lgkm(A)
npad = A.pad(verbose=VERB > 1)

ref = open("cdna_kernels/%s.s.ref" % NAME).read().split("\n")
head_ = [l for l in ref if l.startswith(";") and "@launch" not in l and "Override" not in l and "grid=ceil" not in l]
out = "\n".join(head_) + "\n"
out += f"; @launch grid=(256,1,1) block=(256,1,1) lds={LDS_BYTES}\n"
out += '.amdgcn_target "amdgcn-amd-amdhsa--gfx950"\n.text\n'
out += f".globl {NAME}_kernel\n.p2align 8\n.type {NAME}_kernel,@function\n"
out += "\n".join(l.split(";")[0].rstrip() for l in A.text().split("\n")) + "\n"
out += f""".section .rodata,"a"
.p2align 6
.amdhsa_kernel {NAME}_kernel
  .amdhsa_next_free_vgpr {NVG + NAG}
  .amdhsa_next_free_sgpr 102
  .amdhsa_accum_offset {NVG}
  .amdhsa_group_segment_fixed_size 0
  .amdhsa_kernarg_size 80
  .amdhsa_user_sgpr_count 2
  .amdhsa_user_sgpr_kernarg_segment_ptr 1
  .amdhsa_system_sgpr_workgroup_id_x 1
.end_amdhsa_kernel
"""
open(sys.argv[1], "w").write(out)
print(f"wrote {sys.argv[1]}: {len(A.ins)} lines, {npad} pad states")
```

```python
import re

TRANS = ("v_exp_f32", "v_rcp_f32", "v_log_f32", "v_rsq_f32", "v_sqrt_f32", "v_sin_f32", "v_cos_f32")
REG_RE = re.compile(r"^(-)?([vas])(?:(\d+)|\[(\d+):(\d+)\])$")


def regs_of(tok):
    tok = tok.strip()
    if tok in ("vcc",):
        return {"vcc"}
    if tok in ("exec",):
        return {"exec"}
    if tok == "m0":
        return {"m0"}
    m = REG_RE.match(tok)
    if not m:
        return set()
    f = m.group(2)
    if m.group(3) is not None:
        return {f + m.group(3)}
    return {f + str(i) for i in range(int(m.group(4)), int(m.group(5)) + 1)}


class Ins:
    def __init__(self, text):
        self.text = text
        t = text.split(";")[0].strip()
        self.label = None
        self.mn = ""
        self.reads = set()
        self.writes = set()
        self.kind = "other"
        self.srcC = set()
        self.srcAB = set()
        self.passes = 0
        self.states = 1
        self.target = None
        self.dpp = False
        if t.endswith(":"):
            self.label = t[:-1]
            self.kind = "label"
            self.states = 0
            return
        if t.startswith(".") or not t:
            self.kind = "directive"
            self.states = 0
            return
        parts = t.split(None, 1)
        mn = parts[0]
        self.mn = mn
        rest = parts[1] if len(parts) > 1 else ""
        ops = []
        depth = 0
        cur = ""
        for ch in rest:
            if ch == "[":
                depth += 1
            if ch == "]":
                depth -= 1
            if ch == "," and depth == 0:
                ops.append(cur.strip())
                cur = ""
            else:
                cur += ch
        if cur.strip():
            ops.append(cur.strip())
        mods = ""
        if ops:
            lp = ops[-1].split(None, 1)
            ops[-1] = lp[0]
            mods = lp[1] if len(lp) > 1 else ""
        self.ops = ops
        self.mods = mods
        R = [regs_of(o) for o in ops]
        if mn.startswith("v_mfma"):
            self.kind = "mfma"
            self.passes = 8 if "32x32" in mn else 4
            self.writes = R[0]
            self.srcAB = R[1] | R[2]
            self.srcC = R[3]
            self.reads = self.srcAB | self.srcC
        elif mn.startswith("v_"):
            self.kind = "trans" if mn.replace("_e32", "").replace("_e64", "") in TRANS else "valu"
            if "dpp" in mn or "quad_perm" in mods or "row_" in mods:
                self.dpp = True
            if mn.startswith(("v_addc_co", "v_add_co", "v_sub_co", "v_subb_co")):
                self.writes = R[0] | R[1]
                self.reads = set().union(*R[2:])
            elif mn.startswith("v_permlane"):
                self.writes = R[0] | R[1]
                self.reads = R[0] | R[1]
            elif mn.startswith(("v_fmac", "v_dot2c")):
                self.writes = R[0]
                self.reads = set().union(*R)
            else:
                self.writes = R[0]
                self.reads = set().union(*R[1:]) if len(R) > 1 else set()
                if self.dpp:
                    self.reads |= R[0]
        elif mn.startswith("ds_"):
            self.kind = "ds"
            if mn.startswith(("ds_read", "ds_bpermute", "ds_permute", "ds_swizzle")):
                self.writes = R[0]
                self.reads = set().union(*R[1:])
            else:
                self.reads = set().union(*R)
        elif mn.startswith(("buffer_", "global_")):
            self.kind = "vmem"
            is_lds = bool(re.search(r"\blds\b", mods)) or "_lds_" in mn
            self.lds = is_lds
            if "load" in mn and not is_lds:
                self.writes = R[0]
                self.reads = set().union(*R[1:])
            else:
                self.reads = set().union(*R)
                if is_lds:
                    self.reads |= {"m0"}
            self.wide_store = "store" in mn and ("x4" in mn or "x3" in mn)
            if self.wide_store:
                self.sdata = R[0] if mn.startswith("buffer_") else R[1]
        elif mn.startswith("s_"):
            self.kind = "salu"
            if mn == "s_nop":
                self.states = int(ops[0], 0) + 1
            elif mn.startswith(("s_branch", "s_cbranch")):
                self.kind = "branch"
                self.target = ops[0]
            elif mn in ("s_endpgm",):
                self.kind = "end"
            elif mn.startswith(("s_cmp", "s_waitcnt", "s_barrier", "s_setprio", "s_sleep")):
                self.reads = set().union(*R) if R else set()
            else:
                self.writes = R[0] if R else set()
                self.reads = set().union(*R[1:]) if len(R) > 1 else set()
        m = re.search(r"@use:(\S+)", text)
        self.use = (regs_of(m.group(1)) or {"#" + m.group(1)}) if m else set()
        if "@wm0" in text:
            self.writes = self.writes | {"m0"} | {r for r in self.reads if r[0] == "v"}
        m = re.search(r"@def:(\S+)", text)
        self.defs = {"#" + m.group(1)} if m else set()


def is_vec(r):
    return r[0] in "va" and r not in ("vcc",)


def required(P, C):
    need = 0
    pv = P.kind in ("valu", "trans")
    cv = C.kind in ("valu", "trans")
    if pv and C.kind == "mfma" and (P.writes & C.reads):
        need = max(need, 3 if P.kind == "trans" else 2)
    if P.kind == "mfma":
        D = P.writes
        if C.kind == "mfma":
            if D & C.srcAB:
                need = max(need, P.passes + 4)
            if D & C.srcC:
                if not (D == C.srcC and P.passes == C.passes):
                    need = max(need, P.passes + 2)
            if (D & C.writes) and not (D == C.srcC and P.passes == C.passes):
                need = max(need, P.passes + 2)
        elif cv or C.kind in ("ds", "vmem"):
            if D & (C.reads | C.writes):
                need = max(need, P.passes + 4)
        if (cv or C.kind in ("ds", "vmem")) and (P.srcC & C.writes):
            need = max(need, P.passes - 1)
    if P.kind == "trans" and C.kind == "valu" and (P.writes & C.reads):
        need = max(need, 1)
    if P.kind == "trans" and C.kind in ("ds", "vmem") and (P.writes & C.reads):
        need = max(need, 1)
    if pv:
        sw = {r for r in P.writes if not is_vec(r)}
        if sw:
            if cv and (sw & C.reads):
                need = max(need, 4 if C.mn.startswith(("v_readlane", "v_writelane")) else 2)
            if C.kind == "vmem" and (sw & C.reads):
                need = max(need, 5)
            if C.kind in ("salu", "branch") and (sw & C.reads):
                need = max(need, 1)
        vw = {r for r in P.writes if is_vec(r)}
        if vw:
            if C.mn.startswith(("v_readfirstlane", "v_readlane")) and (vw & C.reads):
                need = max(need, 1)
            if cv and (C.dpp or C.mn.startswith("v_permlane")) and (vw & C.reads):
                need = max(need, 2)
    if P.kind == "salu" and "m0" in P.writes and C.kind == "vmem" and "m0" in C.reads:
        need = max(need, 1)
    if P.kind == "vmem" and getattr(P, "wide_store", False) and (P.sdata & C.writes):
        need = max(need, 2 if cv else 1)
    return need


MAXD = 14


class Asm:
    def __init__(self):
        self.ins = []

    def __call__(self, text):
        for line in text.strip().split("\n"):
            line = line.strip()
            if line:
                self.ins.append(Ins(line))

    def extend(self, lst):
        for l in lst:
            self(l)

    def _preds(self):
        lab = {x.label: i for i, x in enumerate(self.ins) if x.label}
        preds = [[] for _ in self.ins]
        for i, x in enumerate(self.ins):
            if x.kind == "end":
                continue
            if x.kind == "branch":
                preds[lab[x.target]].append(i)
                if x.mn == "s_branch":
                    continue
            if i + 1 < len(self.ins):
                preds[i + 1].append(i)
        return preds

    def pad(self, verbose=False):
        total = 0
        changed = True
        start = 0
        while changed:
            changed = False
            preds = self._preds()
            for i in range(start, len(self.ins)):
                C = self.ins[i]
                if C.kind in ("label", "directive"):
                    continue
                short = 0
                why = None
                stack = [(p, 0) for p in preds[i]]
                seen = {}
                while stack:
                    j, d = stack.pop()
                    if seen.get(j, 99) <= d:
                        continue
                    seen[j] = d
                    P = self.ins[j]
                    if P.kind not in ("label", "directive"):
                        n = required(P, C)
                        if n - d > short:
                            short = n - d
                            why = P
                    nd = d + P.states
                    if nd < MAXD:
                        for p in preds[j]:
                            stack.append((p, nd))
                if short > 0:
                    if verbose:
                        print(f"pad {short} before [{C.text}] due to [{why.text}]")
                    self.ins.insert(i, Ins(f"s_nop {short - 1}"))
                    total += short
                    changed = True
                    start = i
                    break
        return total

    def text(self):
        out = []
        for x in self.ins:
            if x.kind == "label":
                out.append(x.text)
            else:
                out.append("  " + x.text)
        return "\n".join(out) + "\n"


def interleave(*streams_with_weights):
    items = []
    for s in streams_with_weights:
        n = len(s)
        for k, x in enumerate(s):
            items.append(((k + 0.5) / n, len(items), x))
    items.sort(key=lambda t: (t[0], t[1]))
    return [x for _, _, x in items]


TRANS_LAT = 22
FENCE_LAT = 110
WR_COST = 14
DS_COST = 5
DS_LAT = 130
LDS_OCC = 0
TA_OCC = 0


def _cost(x):
    if x.kind == "trans":
        return 8
    if x.kind == "mfma":
        return 8
    if x.kind == "vmem":
        return (20 if (" st" in x.text or "h0" in x.text) else 70) if "clump" in x.mn else 12
    if x.kind == "ds":
        if "clump" in x.mn:
            return 60
        return WR_COST if x.mn.startswith("ds_write_b128") else DS_COST
    if x.kind == "valu":
        e32 = x.mn in ("v_mul_f32", "v_add_u32", "v_sub_f32", "v_and_b32", "v_xor_b32", "v_mov_b32", "v_lshlrev_b32",
                       "v_lshrrev_b32", "v_add_f32", "v_or_b32", "v_mul_legacy_f32")
        return 4 if e32 else 5
    return 4


def _lat(P, C, raw):
    if not raw:
        if P.kind == "mfma" and (P.writes & C.writes) and C.kind != "mfma":
            return P.passes * 4 + 24
        if P.kind == "mfma" and (P.srcC & C.writes) and C.kind != "mfma":
            return P.passes * 4
        if P.kind == "ds" and (P.writes & C.writes):
            return 130
        return _cost(P)
    if P.kind == "mfma":
        if C.kind == "mfma" and P.writes == C.srcC and not (P.writes & C.srcAB):
            return P.passes * 4
        return P.passes * 4 + 24
    if P.kind == "ds":
        m = re.search(r"@lat:(\d+)", P.text)
        return int(m.group(1)) if m else DS_LAT
    if P.kind == "trans":
        return 28 if C.kind == "mfma" else TRANS_LAT
    if P.kind == "valu":
        if C.kind == "mfma" or C.dpp:
            return 14
        if any(not is_vec(r) for r in (P.writes & C.reads)):
            return 14 if C.kind != "vmem" else 26
        return _cost(P)
    return _cost(P)


def schedule(lines, prio_boost=None, ready0=None, mode="cp", trace=False):
    ins = [Ins(l) for l in lines]
    n = len(ins)
    tags = []
    for x in ins:
        t = x.text.split(";", 1)[1] if ";" in x.text else ""
        tags.append(t.split())
    succ = [[] for _ in range(n)]
    npred = [0] * n
    def edge(i, j, lat):
        succ[i].append((j, lat))
        npred[j] += 1
    for j in range(n):
        C = ins[j]
        tj = tags[j]
        rj = {t[3:] for t in tj if t.startswith("@r:")}
        wj = {t[3:] for t in tj if t.startswith("@w:")}
        fj = "@fence" in tj
        vj = "@vmw" in tj
        for i in range(j):
            P = ins[i]
            ti = tags[i]
            lat = None
            if P.writes & C.reads:
                lat = _lat(P, C, True)
            if (P.reads & C.writes) or (P.writes & C.writes):
                l2 = _lat(P, C, False)
                lat = l2 if lat is None else max(lat, l2)
            ri = {t[3:] for t in ti if t.startswith("@r:")}
            wi = {t[3:] for t in ti if t.startswith("@w:")}
            if {t[3:] for t in ti if t.startswith("@x:")} & {t[3:] for t in tj if t.startswith("@y:")}:
                lat = max(lat or 0, 120 if (P.kind == "ds" and (P.defs & C.use)) else _cost(P))
            if (wi & (rj | wj)) or (ri & wj):
                lat = max(lat or 0, _cost(P))
            mem_i = P.kind in ("ds", "vmem") or "@fence" in ti or "@vmw" in ti
            mem_j = C.kind in ("ds", "vmem") or fj or vj
            if ("@fence" in ti and mem_j) or (fj and mem_i):
                slow = fj and P.kind == "ds" and ("lgkmcnt(0)" in C.text or (getattr(P, "defs", set()) & getattr(C, "use", set())))
                lat = max(lat or 0, FENCE_LAT if slow else _cost(P))
            if (P.kind == "vmem" or "@vmw" in ti) and (C.kind == "vmem" or vj):
                lat = max(lat or 0, _cost(P))
            free = ("s_waitcnt", "s_barrier", "s_nop")
            if P.mn == "s_barrier" and C.mn == "s_barrier":
                lat = max(lat or 0, 4)
            if P.kind == "salu" and C.kind == "salu" and not (P.mn.startswith(free) or C.mn.startswith(free)):
                lat = max(lat or 0, 4)
            if lat is not None:
                edge(i, j, lat)
    prio = [0] * n
    for i in range(n - 1, -1, -1):
        p = _cost(ins[i])
        for j, lat in succ[i]:
            p = max(p, lat + prio[j])
        prio[i] = p
    if mode == "order":
        for i in range(n):
            pos = i
            for t in tags[i]:
                if t.startswith("@o:"):
                    pos = float(t[3:])
            prio[i] = -pos + (100000 if ins[i].kind == "mfma" else 0)
    for i in range(n):
        for t in tags[i]:
            if t.startswith("@p:"):
                prio[i] += int(t[3:])
    ready = [0] * n
    for i in range(n):
        for t in tags[i]:
            if t.startswith("@after:"):
                ready[i] = int(t[7:])
        if ready0:
            for r in ins[i].reads | ins[i].writes:
                if r in ready0:
                    ready[i] = max(ready[i], ready0[r])
    rslot = [0] * n
    avail = [i for i in range(n) if npred[i] == 0]
    t = 0
    pipe = 0
    ldsp = 0
    tap = 0
    order = []
    slot = 0
    while avail:
        def rt(i):
            r = ready[i]
            if ins[i].kind == "mfma":
                r = max(r, pipe)
            if ins[i].kind == "ds":
                r = max(r, ldsp)
            if ins[i].kind == "vmem":
                r = max(r, tap)
            return r
        cands = [i for i in avail if rt(i) <= t and rslot[i] <= slot]
        if cands:
            i = max(cands, key=lambda i: (prio[i], -i))
        else:
            i = min(avail, key=lambda i: (max(rt(i), t + 4 * max(0, rslot[i] - slot)), -prio[i]))
            t = max(rt(i), t + 4 * max(0, rslot[i] - slot))
            slot = max(slot, rslot[i])
        avail.remove(i)
        order.append(i)
        slot += 1
        if trace:
            print(f"{t:5d} {lines[i]}")
        if ins[i].kind == "mfma":
            pipe = t + ins[i].passes * 4
        if ins[i].kind == "ds":
            ldsp = t + LDS_OCC * ((13 if "write" in ins[i].mn else 4) if "b128" in ins[i].mn else 2)
        if ins[i].kind == "vmem" and "x4" in ins[i].mn:
            m_ = re.search(r"@occ:(\d+)", ins[i].text)
            tap = t + (int(m_.group(1)) if m_ else TA_OCC)
        for j, lat in succ[i]:
            ready[j] = max(ready[j], t + lat)
            rslot[j] = max(rslot[j], slot + required(ins[i], ins[j]))
            npred[j] -= 1
            if npred[j] == 0:
                avail.append(j)
        t += _cost(ins[i])
    return [lines[i] for i in order], t


def auto_lgkm(asm):
    out = []
    q = []
    for x in asm.ins:
        if x.kind in ("label", "directive"):
            out.append(x)
            continue
        if x.mn == "s_waitcnt":
            m = re.search(r"lgkmcnt\((\d+)\)", x.text)
            if m:
                k = int(m.group(1))
                if len(q) > k:
                    q = q[len(q) - k:] if k else []
            out.append(x)
            continue
        touched = x.reads | x.writes | getattr(x, 'use', set())
        idx = -1
        for i, d in enumerate(q):
            if d & touched:
                idx = i
        if idx >= 0:
            k = len(q) - 1 - idx
            k = min(k, 15)
            out.append(Ins(f"s_waitcnt lgkmcnt({k})"))
            q = q[len(q) - k:] if k else []
        if x.kind == "ds":
            q.append(set(x.writes) | x.defs)
        if x.kind in ("branch", "end") and any(q):
            tagok = "@pend" in x.text
            if not tagok:
                raise RuntimeError(f"pending ds reads at branch {x.text}: {[d for d in q if d]}")
        out.append(x)
    asm.ins = out
```

```python
import sys
import os

sys.path.insert(0, os.path.dirname(os.path.abspath(__file__)))
import asmlib
from asmlib import Asm, Ins, schedule, auto_lgkm

NAME = "standalone__sequential_behavior_din__recsys"
OPT = dict(a.split("=") if "=" in a else (a, "1") for a in sys.argv[2:])
STAMP = int(OPT.get("stamp", 0))
HIST_POL = OPT.get("hpol", "nt").replace("+", " ").replace("none", "")
VERB = int(OPT.get("v", 0))
POL = lambda k: OPT.get(k, "none").replace("+", " ").replace("none", "")
asmlib.DS_LAT = int(OPT.get('dslat', 160))
asmlib.LDS_OCC = int(OPT.get('ldsocc', 3))
asmlib.TA_OCC = int(OPT.get('taocc', 80))
asmlib.FENCE_LAT = int(OPT.get('flat', 110))
asmlib.WR_COST = 27
asmlib.DS_COST = 7
DIST = int(OPT.get("dist", 6))

N0 = 131072
LROW, LMSK = N0, N0 + 4096
TCP = N0 + 8192
W2C = TCP + 1024
DTAB = W2C + 1024
CPKB = DTAB + 8192
LDS_BYTES = CPKB + 4096
OOB = 0x100000

NVG = 256
V_EN = 0
V_FA = 8
V_TA = 16
V_CPK = 60
V_B2 = 28
V_SC = 32
V_MVAL = 36
V_APK = 40
V_HP = 44
V_MVA, V_ENA, V_K0, V_ST = 52, 53, 54, 55
V_DMA = 56
P_TRS, P_DG, P_TF, V_B1, P_CW = 32, 33, 35, 40, 41
P_XW, P_XR = 36, 36
AC = (64, 80, 96, 112)
WE = 128
A_F = 0
A_TR = 64
A_W2 = 128
A_O = 160
A_HALF = 192
ONES = {2: 194, 0: 196, 3: 198, 1: 200}
V_SELH, V_SELL = 24, 28
V_B2L = 42
A_CACC = 212
V_CACC = 44
A_RT = 0
A_RS = 204
A_TFA = 160
NAG = 256
SLOT = (0, 1, 2, 3)


def we(j, ks):
    return WE + 32 * j + 4 * ks


def v(i, n=1):
    return f"v{i}" if n == 1 else f"v[{i}:{i + n - 1}]"


def a(i, n=1):
    return f"a{i}" if n == 1 else f"a[{i}:{i + n - 1}]"


def s(i, n=1):
    return f"s{i}" if n == 1 else f"s[{i}:{i + n - 1}]"


M32 = "v_mfma_f32_32x32x16_bf16"
M16 = "v_mfma_f32_16x16x32_bf16"

A = Asm()
nstamp = [0]
CLUMPS = {}


pend = []


def stamp_lines(flush):
    out = []
    if flush:
        for k in pend:
            r = 86 + 4 * (k % 4)
            out += [f"v_writelane_b32 v{V_ST}, s{r}, {k}", f"v_writelane_b32 v{V_ST}, s{r + 2}, {32 + k}"]
        pend.clear()
    k = nstamp[0]
    nstamp[0] += 1
    assert len(pend) < 4
    pend.append(k)
    r = 86 + 4 * (k % 4)
    return out + [f"s_memrealtime s[{r}:{r + 1}]", f"s_memtime s[{r + 2}:{r + 3}]"]


LITE = STAMP == 2


def stamp(flush=False, force=False):
    if STAMP and (not LITE or force or nstamp[0] == 0):
        if flush:
            A("s_waitcnt lgkmcnt(0)")
        A.extend(stamp_lines(flush))


def sstamp():
    if not STAMP or LITE or int(OPT.get("prof", 0)):
        return []
    k = nstamp[0]
    CLUMPS[f"st{k}"] = stamp_lines(True)
    return [f"buffer_clump_store v{V_ST}"]


vm_log = []


def vm(text, tag):
    vm_log.append(tag)
    return text


def vmcount(tag):
    last = max(i for i, t in enumerate(vm_log) if t == tag)
    n = len(vm_log) - 1 - last
    assert n <= 63
    return n


def emit_sched(lines, name, **kw):
    o, t = schedule(lines, mode="order", **kw)
    if VERB:
        print(f"region {name}: {len(o)} instrs, model {t} cycles")
    PROF = int(OPT.get("prof", 0))
    for li, l in enumerate(o):
        if PROF and name == "head" and li % PROF == 0 and nstamp[0] < 30:
            A.extend(stamp_lines(True))
            print("prof", nstamp[0] - 1, li, l[:60])
        if l.startswith(("buffer_clump", "ds_clump")):
            A.extend(CLUMPS[l.split(";")[1].split()[0]])
        else:
            A(l if ("@def" in l or "@use" in l) else l.split(";")[0])


def mix(main, extra, every, start=0):
    out = []
    extra = list(extra)
    for i, l in enumerate(main):
        if i >= start and (i - start) % every == 0 and extra:
            out.append(extra.pop(0))
        out.append(l)
    return out + extra


def mixg(main, groups, every, start=0):
    out = []
    groups = list(groups)
    for i, l in enumerate(main):
        if i >= start and (i - start) % every == 0 and groups:
            out += groups.pop(0)
        out.append(l)
    for g_ in groups:
        out += g_
    return out


def sbarrier(tag, lgkm0=False, extra=""):
    o = []
    w = (f"vmcnt({vmcount(tag)}) " if tag else "") + ("lgkmcnt(0)" if lgkm0 else "")
    if w:
        o.append(f"s_waitcnt {w}")
    return o + [f"s_barrier ; @fence {extra}"]


SRD_H, SRD_M, SRD_T, SRD_W1, SRD_W2, SRD_O = 36, 40, 44, 48, 56, 60
SOFF = {0: "s52", 1: "s53", 2: "s54", 3: "0"}
SQ = {0: "0", 1: "32", 2: "64", 3: "s55", 4: "s72", 5: "s73", 6: "s74", 7: "s11"}
SST = {0: "0", 1: "s6", 2: "s10", 3: "s15"}
ROW0 = (0, 256, 128, 384)


def w1_piece(st, k):
    out = []
    if k % 4 == 0:
        out.append(f"s_add_u32 m0, s14, {st * 8192 + (k >> 2) * 4096}")
    out.append(vm(f"buffer_load_dwordx4 v{V_DMA + k}, {s(SRD_W1, 4)}, {SST[st]} offen offset:{(k & 3) * 1024} {POL('wpol')} lds", f"S{st}{'ab'[k >> 2]}"))
    return out


def hist_load(blk, half, lo=0, hi=4):
    en = V_EN + 4 * half
    out = [[f"ds_read_b128 {v(en, 4)}, v{V_ENA} offset:{blk * 128 + half * 16} ; @r:list"]] if lo == 0 else []
    for i in range(lo, hi):
        q = 4 * half + i
        g = [f"s_add_u32 m0, s14, {SLOT[blk & 3] * 8192 + half * 4096}"] if i == 0 else []
        g += [f"v_xad_u32 v{en + i}, v{V_K0}, {SQ[q]}, v{en + i}",
              vm(f"buffer_load_dwordx4 v{en + i}, {s(SRD_H, 4)}, {SOFF[i]} offen offset:{1024 * i} {HIST_POL} lds", f"H{blk}")]
        out.append(g)
    return out


L, G_, HI, N32, B0, B1, PI, GA, M2, M3, L3, VOOB, Q2 = (f"v{r}" for r in range(112, 125))
t0, t1, t2, t3 = "v108", "v109", "v110", "v111"
A(f"{NAME}_kernel:")
A("s_cmp_ge_u32 s2, 256")
A("s_cbranch_scc1 L_end")
A("s_load_dwordx16 s[16:31], s[0:1], 0")
if STAMP:
    A("s_load_dwordx2 s[84:85], s[0:1], 72")
SPIN = int(OPT.get("spin", 0))
if SPIN:
    A("s_memrealtime s[96:97]")
A("s_getpc_b64 s[12:13]")
A("L_pc:")
A(f"v_lshrrev_b32 {t0}, 6, v0")
A(f"v_and_b32 {L}, 63, v0")
A(f"v_readfirstlane_b32 s5, {t0}")
A(f"v_and_b32 {B0}, 1, v0")
A("s_bfe_u32 s7, s2, 0x50003")
A("s_lshl2_add_u32 s8, s7, s5")
A("s_lshl_b32 s7, s8, 8")
A(f"v_lshl_add_u32 {t0}, {B0}, 7, s7")
A(f"v_min_u32 {t0}, L_codeend-L_pc-4, {t0}")
A(vm(f"global_load_dword v128, {t0}, s[12:13] {POL('ppol')}", "pf"))
stamp()
A(f"v_and_b32 {t1}, 7, v0")
A("s_lshl_b32 s7, s8, 10")
A(f"v_lshl_add_u32 {t1}, {t1}, 7, s7")
A(f"v_and_b32 {L3}, 3, v0")
A("s_lshl_b32 s14, s5, 15")
for r, n in ((SRD_M, 400), (SRD_T, 1024), (SRD_W1, 131072)):
    A(f"s_mov_b32 s{r + 2}, {n}")
    A(f"s_mov_b32 s{r + 3}, 0x20000")
A(f"v_lshrrev_b32 {t2}, 2, {L}")
A(f"v_lshlrev_b32 {t2}, 8, {t2}")
A(f"v_lshl_add_u32 {t2}, {L3}, 4, {t2}")
A("s_lshl_b32 s80, s5, 6")
A(f"v_add_u32 v{V_DMA}, s80, {t2}")
for k in range(1, 8):
    A(f"v_add_u32 v{V_DMA + k}, {ROW0[k >> 1] * 256 + (k & 1) * 4096 - (k & 3) * 1024}, v{V_DMA}")
A("s_lshl_b32 s7, s5, 8")
A(f"v_lshl_add_u32 {t2}, {L}, 2, s7")
A(f"v_lshlrev_b32 {t3}, 3, {L}")
A("s_lshl2_add_u32 s4, s2, s5")
A("s_mul_i32 s8, s4, 400")
A("s_lshl_b32 s9, s2, 10")
A("s_movk_i32 s6, 8192")
A("s_movk_i32 s10, 16384")
A("s_movk_i32 s15, 24576")
A(f"s_add_u32 m0, s7, {TCP}")
A("s_waitcnt lgkmcnt(0)")
A(vm(f"global_load_dword v129, {t1}, s[22:23] {POL('ppol')}", "pf"))
if int(OPT.get("tlb", 0)):
    A("s_lshl2_add_u32 s7, s2, s5")
    A("s_mul_i32 s7, s7, 51200")
    A("v_mov_b32 v168, s7")
    A(vm("global_load_dword v169, v168, s[18:19] nt", "pf"))
    A("v_mov_b32 v170, s9")
    A(vm("global_load_dword v171, v170, s[30:31] nt", "pf"))
A(f"s_add_u32 s{SRD_M}, s20, s8")
A(f"s_addc_u32 s{SRD_M + 1}, s21, 0")
A(f"s_add_u32 s{SRD_T}, s16, s9")
A(f"s_addc_u32 s{SRD_T + 1}, s17, 0")
A(vm(f"buffer_load_dword v132, {t2}, {s(SRD_T, 4)}, 0 offen {POL('spol')}", "sm"))
A(vm(f"buffer_load_dwordx2 v[130:131], {t3}, {s(SRD_M, 4)}, 0 offen {POL('spol')}", "sm"))
A(f"s_mov_b32 s{SRD_W1}, s22")
A(f"s_mov_b32 s{SRD_W1 + 1}, s23")
A(vm(f"buffer_load_dword {t2}, {s(SRD_T, 4)}, 0 offen {POL('spol')} lds", "sm"))
A(f"s_mov_b32 m0, {W2C}")
A(f"v_and_b32 {t1}, 15, {L}")
A(f"v_lshlrev_b32 {t1}, 4, {t1}")
A(vm(f"global_load_lds_dwordx4 {t1}, s[26:27]", "sm"))
pieces = [(st, k) for st in range(4) for k in range(8)]
NPRE = int(OPT.get("npre", 8))
stamp()


def take(n):
    global pieces
    r = [w1_piece(st, k) for st, k in pieces[:n]]
    pieces = pieces[n:]
    return r


u0, u1, u2 = "v125", "v126", "v127"
CB = f"""v_lshrrev_b32 {HI}, 5, {L}
v_bfe_u32 {B1}, {L}, 1, 1
v_bfe_u32 {GA}, {L}, 4, 1
v_bfe_u32 {M2}, {L}, 2, 1
v_bfe_u32 {M3}, {L}, 3, 1
v_bfe_u32 {Q2}, {L}, 2, 2
v_lshrrev_b32 {G_}, 4, {L}
v_and_b32 {N32}, 31, {L}
v_and_b32 {PI}, 0x13, {L}
v_lshl_or_b32 {PI}, {M2}, 3, {PI}
v_lshl_or_b32 {PI}, {M3}, 2, {PI}
v_cmp_eq_u32 s[76:77], {M2}, {GA}
v_cmp_eq_u32 s[78:79], {M2}, {HI}
v_mov_b32 {VOOB}, {OOB}
ds_read_b128 {a(A_HALF, 4)}, {VOOB}
ds_read_b128 {a(A_HALF + 4, 4)}, {VOOB}
ds_read_b128 {a(A_HALF + 8, 4)}, {VOOB}
s_mov_b32 s33, 0xbfb8aa3b
v_mov_b32 v136, 0
v_mov_b32 v137, 0
v_mov_b32 v138, 0
v_mov_b32 v139, 0
v_mov_b32 v140, 2.0
v_mov_b32 v141, 2.0
v_mov_b32 v142, 2.0
v_mov_b32 v143, 2.0
s_lshl_b32 s75, s5, 10
s_add_u32 s75, s75, {LROW}
s_lshl_b32 s81, s5, 11
s_add_u32 s81, s81, {DTAB}
v_lshl_add_u32 v160, {L}, 4, s75
v_lshl_add_u32 v161, {L}, 4, s81
ds_write_b128 v161, v[136:139]
ds_write_b128 v161, v[136:139] offset:1024
ds_write_b128 v160, v[140:143]
ds_write_b128 v160, v[136:139] offset:4096
v_lshl_add_u32 v133, {L}, 5, s81
v_lshl_add_u32 v133, {L3}, 2, v133
v_lshlrev_b32 {t0}, 5, {GA}
v_lshl_add_u32 {t0}, {B0}, 4, {t0}
v_lshl_add_u32 {t0}, {B1}, 3, {t0}
v_lshl_add_u32 {t0}, {Q2}, 6, {t0}
v_lshl_add_u32 {t0}, {HI}, 9, {t0}
v_add_u32 v{P_TRS}, s14, {t0}
v_and_b32 {t0}, 15, {PI}
v_lshlrev_b32 {t0}, 4, {t0}
v_add_u32 {t0}, {DTAB}, {t0}
v_add_u32 {t1}, s5, {GA}
v_and_b32 {t1}, 3, {t1}
v_xor_b32 {t2}, 2, {t1}
v_lshl_add_u32 {t1}, {t1}, 11, {t0}
v_lshl_add_u32 {t2}, {t2}, 11, {t0}
v_cndmask_b32 v{P_DG}, {VOOB}, {t1}, s[78:79]
v_cndmask_b32 v{P_DG + 1}, {VOOB}, {t2}, s[78:79]
v_add_u32 {t0}, s5, {L}
v_and_b32 {t0}, 3, {t0}
v_lshlrev_b32 {t0}, 8, {t0}
v_lshl_add_u32 {t0}, {HI}, 4, {t0}
v_add_u32 {t0}, {TCP}, {t0}
v_cndmask_b32 v{P_TF}, {VOOB}, {t0}, s[76:77]
v_lshlrev_b32 {t0}, 4, {B0}
v_mov_b32 {t1}, 0xffff
v_lshlrev_b32 {t0}, {t0}, {t1}
v_cndmask_b32 {t0}, 0, {t0}, s[78:79]
v_lshl_or_b32 {t1}, {M3}, 1, {B1}
v_and_b32 {t2}, 0xbfb9bfb9, {t0}
v_and_b32 {t3}, 0x3b2c3b2c, {t0}""".split("\n")
for x in range(4):
    CB.append(f"v_cmp_eq_u32 {s(64 + 2 * x, 2)}, {x}, {t1}")
for x in range(4):
    CB.append(f"v_cndmask_b32 v{V_SELH + x}, 0, {t2}, {s(64 + 2 * x, 2)}")
    CB.append(f"v_cndmask_b32 v{V_SELL + x}, 0, {t3}, {s(64 + 2 * x, 2)}")
CB += f"""v_lshlrev_b32 v152, 10, {L}
v_add_u32 v153, 0x100, v152
v_add_u32 v154, 0x200, v152
v_add_u32 v155, 0x300, v152""".split("\n")

CC = f"""s_mul_i32 s8, s4, 51200
s_sub_u32 s8, s8, 3072
s_subb_u32 s7, 0, 0
s_add_u32 s{SRD_H}, s18, s8
s_addc_u32 s{SRD_H + 1}, s19, s7
s_lshl_b32 s8, s4, 8
s_add_u32 s{SRD_O}, s30, s8
s_addc_u32 s{SRD_O + 1}, s31, 0
s_mov_b32 s{SRD_H + 2}, {51200 + 3072}
s_mov_b32 s{SRD_H + 3}, 0x20000
s_mov_b32 s{SRD_O + 2}, 256
s_mov_b32 s{SRD_O + 3}, 0x20000""".split("\n")
for i_ in range(3):
    CC.append(f"s_movk_i32 {SOFF[i_]}, {3072 - 1024 * i_}")
for q in range(3, 8):
    CC.append(f"s_movk_i32 {SQ[q]}, {q << 5}")
CC += f"""v_lshl_add_u32 v{V_ENA}, {G_}, 5, s75
v_and_b32 {t0}, 15, {L}
v_xor_b32 {t0}, {GA}, {t0}
v_lshlrev_b32 v{V_K0}, 4, {t0}
v_and_b32 {u0}, 7, {L}
v_lshl_or_b32 {u1}, {u0}, 1, {M3}
v_xor_b32 {u1}, {u1}, {HI}
v_lshlrev_b32 {u1}, 4, {u1}
v_lshl_add_u32 {u1}, {u0}, 10, {u1}
v_lshrrev_b32 {u2}, 3, {N32}
v_lshl_add_u32 {u1}, {u2}, 8, {u1}
v_add_u32 v{V_FA}, s14, {u1}""".split("\n")
for ks in range(1, 8):
    CC.append(f"v_xor_b32 v{V_FA + ks}, {SQ[ks]}, v{V_FA}")
CC += f"""v_bfe_u32 {u0}, {L}, 2, 3
v_lshl_or_b32 {u1}, {u0}, 1, {HI}
v_xor_b32 {u1}, {u1}, {B1}
v_lshlrev_b32 {u1}, 4, {u1}
v_lshl_add_u32 {u1}, {u0}, 10, {u1}
v_lshl_add_u32 {u1}, {HI}, 8, {u1}
v_lshl_add_u32 {u1}, {B0}, 3, {u1}
v_add_u32 v{V_TA}, s14, {u1}""".split("\n")
for dt in range(1, 8):
    CC.append(f"v_xor_b32 v{V_TA + dt}, {SQ[dt]}, v{V_TA}")
CC += f"""v_lshlrev_b32 {u0}, 6, {B0}
v_lshl_add_u32 {u0}, {G_}, 4, {u0}
v_add_u32 v{V_MVA}, s75, {u0}
v_lshl_add_u32 v{P_XW}, {L}, 4, s14
s_mov_b32 s7, 0x1ffff
v_add_u32 v{P_XR + 1}, 0x18000, v{P_XW}
v_xor_b32 v{P_XR + 2}, 0x10000, v{P_XW}
v_add_u32 v{P_XR + 3}, 0x8000, v{P_XW}
v_and_b32 v{P_XR + 1}, s7, v{P_XR + 1}
v_and_b32 v{P_XR + 3}, s7, v{P_XR + 3}
s_lshl_b32 s7, s5, 9
s_add_u32 s7, s7, {CPKB}
v_lshl_add_u32 v{P_CW}, {N32}, 4, s7
v_cmp_eq_u32 vcc, {GA}, {B0}
s_add_u32 s7, s80, {W2C}
v_lshl_add_u32 {u0}, {HI}, 4, s7
v_cndmask_b32 v134, {VOOB}, {u0}, vcc
v_cmp_gt_u32 vcc, 32, {L}
v_mov_b32 {u0}, 0x3f803f80
v_mov_b32 {u1}, 0x3f003f00
v_cndmask_b32 {u0}, 0, {u0}, vcc
s_waitcnt lgkmcnt(0)
v_accvgpr_write_b32 {a(A_HALF)}, {u1}
v_accvgpr_write_b32 {a(A_HALF + 4)}, {u0}
v_accvgpr_write_b32 {a(A_HALF + 9)}, {u0}""".split("\n")
CE = int(OPT.get("ce", 5))
NE = int(OPT.get("ne", 32))
wi = max(i for i, x in enumerate(A.ins) if x.text.startswith("s_waitcnt lgkmcnt(0)"))
wrs = [l for l in CB if l.startswith("ds_write_b128")]
CBn = [l for l in CB if not l.startswith("ds_write_b128")]
early, CBn = CBn[:NE], CBn[NE:]
A.ins[wi:wi] = [Ins(l) for l in early]
A.extend([f"v_lshl_add_u32 {u0}, {PI}, 1, s80",
          vm(f"global_load_ushort v{V_B1}, {u0}, s[24:25]", "sm2"), vm(f"global_load_ushort v{V_B2L}, v136, s[28:29]", "sm2")])
rest = mixg(CBn, take(NPRE), CE, 0) + CC[:12]
A.extend(rest + mix(CC[12:], wrs, 12, 2))
stamp()

TP = """v_and_b32 v135, 0xffff0000, v132
v_lshlrev_b32 v132, 16, v132
v_mul_f32 v132, s33, v132
v_mul_f32 v135, s33, v135
v_cvt_pk_bf16_f32 v132, v132, v135
ds_write_b16 v133, v132
ds_write_b16_d16_hi v133, v132 offset:18 ; @def:tab""".split("\n")
RL = """v_lshlrev_b32 v156, 16, v130
v_and_b32 v157, 0xffff0000, v130
v_lshlrev_b32 v158, 16, v131
v_and_b32 v159, 0xffff0000, v131""".split("\n")
for j in range(4):
    RL.append(f"v_cmp_neq_f32 {s(64 + 2 * j, 2)}, 0, v{156 + j}")
RL += """v_mbcnt_lo_u32_b32 v148, s64, 0
s_bcnt1_i32_b64 s12, s[64:65]
v_mbcnt_hi_u32_b32 v148, s65, v148
s_bcnt1_i32_b64 s13, s[66:67]
v_mbcnt_lo_u32_b32 v148, s66, v148
s_bcnt1_i32_b64 s8, s[68:69]
v_mbcnt_hi_u32_b32 v148, s67, v148
s_bcnt1_i32_b64 s9, s[70:71]
v_mbcnt_lo_u32_b32 v148, s68, v148
s_add_u32 s12, s12, s13
v_mbcnt_hi_u32_b32 v148, s69, v148
s_add_u32 s8, s8, s9
v_mbcnt_lo_u32_b32 v148, s70, v148
s_add_u32 s13, s12, s8
v_mbcnt_hi_u32_b32 v148, s71, v148
s_sub_u32 s32, 0x100, s13
s_and_b32 s32, s32, 127
v_add_u32 v148, s32, v148
v_addc_co_u32 v149, s[78:79], v148, 0, s[64:65]
v_addc_co_u32 v150, s[78:79], v149, 0, s[66:67]
v_addc_co_u32 v151, s[78:79], v150, 0, s[68:69]""".split("\n")
RL += [f"v_and_or_b32 v{144 + j}, v{148 + j}, 28, s75" for j in range(4)]
RL += [f"v_and_b32 v{162 + j}, 3, v{148 + j}" for j in range(4)]
RL += [f"v_lshrrev_b32 v{148 + j}, 5, v{148 + j}" for j in range(4)]
RL += [f"v_lshl_add_u32 v{144 + j}, v{162 + j}, 5, v{144 + j}" for j in range(4)]
RL += [f"v_lshl_add_u32 v{148 + j}, v{148 + j}, 7, v{144 + j}" for j in range(4)]
if int(OPT.get("oobw", 0)):
    for j in range(4):
        RL.append(f"v_cndmask_b32 v{148 + j}, v140, v{148 + j}, {s(64 + 2 * j, 2)}")
    for j in range(4):
        RL.append(f"ds_write2st64_b32 v{148 + j}, v{152 + j}, v{156 + j} offset0:0 offset1:16 ; @w:list")
else:
    CLUMPS["lw"] = []
    for j in range(4):
        CLUMPS["lw"] += [f"s_mov_b64 exec, {s(64 + 2 * j, 2)}", f"ds_write2st64_b32 v{148 + j}, v{152 + j}, v{156 + j} offset0:0 offset1:16"]
    CLUMPS["lw"].append("s_mov_b64 exec, -1")
    RL.append("ds_clump_write v[148:159], s[64:71]")
W2R = [f"ds_read_b128 {a(A_W2 + 4 * q, 4)}, v134 offset:{(4 - (q >> 1)) * 64 + 32 * (q & 1)}" for q in range(8)]


def kstep(ks):
    st, u = ks >> 1, ks & 1
    rt = A_RT + 16 * ks
    RA, RC, RB, RD_, TF, DG = rt, rt + 4, rt + 8, rt + 12, A_TFA + 4 * ks, A_RS + 8 * (ks % 3)
    base = st * 8192 + u * 1024
    tr = lambda reg, off, tag: [f"ds_read_b64_tr_b16 {a(reg + 2 * j2, 2)}, v{P_TRS} offset:{base + off + j2 * 256} ; @r:ldS{st}{tag} @r:reg{st} @x:rd{st} @def:rd{st}" for j2 in range(2)]
    r1 = tr(RA, 0, "a") + tr(RC, 2048, "a")
    r2 = tr(RD_, 6144, "b") + tr(RB, 4096, "b")
    r3 = [f"ds_read_b128 {a(DG + 4 * p_, 4)}, v{P_DG + p_} offset:{ks * 256} ; @r:tab" for p_ in range(2)]
    r3.append(f"ds_read_b128 {a(TF, 4)}, v{P_TF} offset:{32 * ks} ; @r:tab")
    pt = AC[2 + (ks & 1)]
    d0 = AC[ks & 1]
    pm = [f"{M32} {v(pt, 16)}, {v(V_SELH, 4)}, {a(RA, 4)}, 0",
          f"{M32} {v(pt, 16)}, {v(V_SELH, 4)}, {a(RC, 4)}, {v(pt, 16)}",
          f"{M32} {v(pt, 16)}, {v(V_SELL, 4)}, {a(RA, 4)}, {v(pt, 16)}",
          f"{M32} {v(pt, 16)}, {v(V_SELL, 4)}, {a(RC, 4)}, {v(pt, 16)}"]
    dm = [f"{M32} {v(d0, 16)}, {a(DG, 4)}, {a(RD_, 4)}, {v(pt, 16)}",
          f"{M32} {v(pt, 16)}, {a(DG + 4, 4)}, {a(RD_, 4)}, {v(pt, 16)}"]
    cm = [f"{M16} {v(V_CACC, 4)}, {a(TF, 4)}, {a(RC, 4)}, {'0' if ks == 0 else v(V_CACC, 4)}",
          f"{M16} {v(V_CACC + 4, 4)}, {a(TF, 4)}, {a(RB, 4)}, {'0' if ks == 0 else v(V_CACC + 4, 4)}"]
    cv = []
    for j in (1, 2, 3, 0):
        d = (d0, pt)[j >> 1] + 8 * (j & 1)
        for k in range(4):
            cv.append(f"v_cvt_pk_bf16_f32 v{we(j, ks) + k}, v{d + 2 * k}, v{d + 2 * k + 1}")
    return r1, r2, r3, pm, dm, cm, cv


XSLOT = {1: 2, 2: 3, 3: 3}


def xw(j, ks):
    return f"ds_write_b128 v{P_XW}, {v(we(j, ks), 4)} offset:{XSLOT[j] * 8192 + ks * 1024} ; @w:reg{XSLOT[j]} @def:xw"


def xr(j, ks):
    return f"ds_read_b128 {v(we(j, ks), 4)}, v{P_XR + j} offset:{XSLOT[j] * 8192 + ks * 1024} ; @def:xr"


def cpost():
    X = [V_CPK + r for r in range(4)]
    Y = [V_CACC + r for r in range(4)]
    Z = [V_CACC + 4 + r for r in range(4)]
    o = [f"v_lshlrev_b32 v{V_B1}, 16, v{V_B1} ; @r:ldS1b", f"v_mul_f32 v{V_B1}, s33, v{V_B1}"]
    for fn in (lambda r: f"v_sub_f32 v{Y[r]}, v{Z[r]}, v{Y[r]}",
               lambda r: f"v_fma_f32 v{Y[r]}, v{Y[r]}, s33, v{V_B1}",
               lambda r: f"v_and_b32 v{Z[r]}, 0xffff0000, v{Y[r]}",
               lambda r: f"v_sub_f32 v{Y[r]}, v{Y[r]}, v{Z[r]}",
               lambda r: f"v_cvt_pk_bf16_f32 v{X[r]}, v{Z[r]}, v{Y[r]}"):
        o += [fn(r) for r in range(4)]
    o.append(f"ds_write_b128 v{P_CW}, {v(V_CPK, 4)} ; @def:xw")
    o.append(f"ds_write_b128 v{P_CW}, {v(V_CPK, 4)} offset:2048 ; @def:xw")
    return o


def vwait(tag, extra=""):
    return f"s_waitcnt vmcnt({vmcount(tag)})"


def xbar():
    return ["s_nop 0 ; @fence @use:xw", "s_barrier ; @fence @use:xr"] + sstamp()


def boost(l, p=1000):
    return l + (" " if ";" in l else " ; ") + f"@p:{p}"


ZF = int(OPT.get("zf", 1))


def f0_reads():
    o = [f"v_bfe_u32 v{V_EN}, v{V_FA}, 8, 5 ; @r:ldH0", f"v_cmp_gt_u32 vcc, s32, v{V_EN}", f"v_cndmask_b32 v{V_EN}, 0, 1, vcc"]
    for ks in range(8):
        t = V_EN + 1 + (ks % 7)
        o.append(f"v_lshl_or_b32 v{t}, v{V_EN}, 20, v{V_FA + ks}")
        o.append(f"ds_read_b128 {a(A_F + 4 * ks, 4)}, v{t} offset:{SLOT[0] * 8192} ; @r:ldH0")
    return o


def f_reads(blk):
    f = A_F + 32 * (blk & 1)
    return [f"ds_read_b128 {a(f + 4 * ks, 4)}, v{V_FA + ks} offset:{SLOT[blk & 3] * 8192} ; @r:ldH{blk}" for ks in range(8)]


def p_g(sig):
    j, blk = sig & 3, sig >> 2
    f = A_F + 32 * (blk & 1)
    ac = AC[j]
    gm = [f"{M32} {v(ac, 16)}, {v(we(j, ks), 4)}, {a(f + 4 * ks, 4)}, {'0' if ks == 0 else v(ac, 16)}" for ks in range(8)]
    gm.append(f"{M32} {v(ac, 16)}, {v(V_CPK, 4)}, {a(ONES[j], 4)}, {v(ac, 16)}")
    return gm


KS = [kstep(ks) for ks in range(8)]
A(f"s_waitcnt vmcnt({vmcount('sm')})")
stamp(True)


def own(lst, st):
    return [[l + f" ; @y:rd{st} @use:rd{st}" if l.startswith("buffer") else l for l in g] for g in lst]


def trs(st):
    return [vwait(f"S{st}a")] + KS[2 * st][0] + KS[2 * st + 1][0] + [vwait(f"S{st}b")] + KS[2 * st][1] + KS[2 * st + 1][1]


def comp(ks):
    r1, r2, r3, pm, dm, cm, cv = KS[ks]
    return pm + dm + cm


def hot(groups):
    return [boost(l, 200000) for g in groups for l in g]


WOCC = int(OPT.get("wocc", 50))
GATE = int(OPT.get("gate", 8))


def wburst(n, last=False):
    o = [l + f" @occ:{WOCC}" if l.startswith("buffer") else l for l in hot(take(n))]
    if last:
        o[-1] += " @x:w1done"
    return o


def gated(ks):
    c = comp(ks)
    if ks >= GATE:
        c[0] += " ; @y:w1done"
    return c


def h0_piece(q, en):
    i = q & 3
    return [f"v_xad_u32 v{en}, v{V_K0}, {SQ[q]}, v{en}",
            f"buffer_load_dwordx4 v{en}, {s(SRD_H, 4)}, {SOFF[i]} offen offset:{1024 * i} {HIST_POL} lds"]


def h0_parts():
    rd1 = [f"ds_read_b128 v[56:59], v{V_ENA} offset:16 ; @r:list"]
    m1 = f"s_add_u32 m0, s14, {SLOT[0] * 8192 + 4096}"
    m0_ = f"s_add_u32 m0, s14, {SLOT[0] * 8192}"
    p7, p6 = h0_piece(7, 59), h0_piece(6, 58)
    first = [rd1, [m1, p7[0], vm(p7[1] + " ; @y:rd0 @use:rd0", "H0")], [p6[0], vm(p6[1], "H0")]]
    opt = []
    for k, (thr, mm, qs, regs, base) in enumerate(((24, m1, (5, 4), "v[56:57]", 52), (16, m0_, (3, 2), "v[6:7]", 4), (8, m0_, (1, 0), "v[4:5]", 4))):
        seq = [f"s_cmp_ge_u32 s32, {thr} ; @use:{regs}", f"s_cbranch_scc1 L_h0{k} ; @pend", mm]
        for q in qs:
            seq += h0_piece(q, base + q)
        CLUMPS[f"h0{k}"] = seq + [f"L_h0{k}:"]
        opt.append([f"buffer_clump_x4 {regs}, v{V_K0}, s32, m0"])
    rd0 = [f"ds_read_b128 v[4:7], v{V_ENA} ; @r:list"]
    return first, opt, rd0


def h1_piece(q):
    i = q & 3
    g = [f"ds_read_b128 v[0:3], v{V_ENA} offset:{128 + (q >> 2) * 16} ; @r:list"] if i == 0 else []
    g += [f"s_add_u32 m0, s14, {SLOT[1] * 8192 + (q >> 2) * 4096}"] if q in (0, 2, 4, 6) else []
    g += [f"v_xad_u32 v{i}, v{V_K0}, {SQ[q]}, v{i}",
          vm(f"buffer_load_dwordx4 v{i}, {s(SRD_H, 4)}, {SOFF[i]} offen offset:{1024 * i} {HIST_POL} lds" + (" ; @y:rd1 @use:rd1" if q == 0 else ""), "H1")]
    return g


NB0 = int(OPT.get("nb0", 5))
HO = int(OPT.get("ho", 0))
EARLY = int(OPT.get("early", 0))
tfs = [KS[k][2][2] for k in range(8)]
dgs = [KS[k][2][:2] for k in range(8)]
pd = lambda ks: KS[ks][3] + KS[ks][4]
cmm = lambda ks: KS[ks][5]
PREP = TP + RL + (wburst(NB0) if NB0 else []) + trs(0) + ["s_barrier ; @fence @w:tab @use:tab"] + sstamp() + dgs[0] + dgs[1] + tfs[:2]
PREP += wburst(20 - NPRE - NB0) + W2R + tfs[2:] + trs(1) + wburst(8) + trs(2) + wburst(4, True)
assert not pieces
h0f, h0o, h0r = h0_parts()
if HO == 0:
    PREP += hot(h0f + [h0r, h1_piece(0), h1_piece(1)]) + trs(3)
    PREP += hot([h0o[0], h1_piece(2), h1_piece(3), h0o[1], h1_piece(4), h1_piece(5), h0o[2], h1_piece(6), h1_piece(7)])
    CLUMPS["h0w"] = ["s_waitcnt vmcnt(8)", "s_cmp_ge_u32 s32, 24", "s_cbranch_scc1 L_h0w ; @pend", "s_waitcnt vmcnt(6)",
                     "s_cmp_ge_u32 s32, 16", "s_cbranch_scc1 L_h0w ; @pend", "s_waitcnt vmcnt(2)", "L_h0w:"]
else:
    PREP += hot(h0f + [h0r, h0o[0], h1_piece(0), h1_piece(1)]) + trs(3)
    PREP += hot([h0o[1], h1_piece(2), h1_piece(3), h0o[2], h1_piece(4), h1_piece(5), h1_piece(6), h1_piece(7)])
    CLUMPS["h0w"] = ["s_waitcnt vmcnt(8)", "s_cmp_ge_u32 s32, 16", "s_cbranch_scc1 L_h0w ; @pend", "s_waitcnt vmcnt(4)", "L_h0w:"]
PREP += pd(0) + cmm(0) + pd(1) + cmm(1) + dgs[2] + KS[0][6]
for ks in range(2, 8):
    PREP += (cmm(ks) + cmm(ks + 1) if ks % 2 == 0 else []) + pd(ks) + (dgs[ks + 1] if ks < 7 else [])
    PREP += (cpost() if ks == 7 else []) + mix(KS[ks - 1][6], [xw(1, ks - 2), xw(2, ks - 2)], 8, 1)
left = KS[7][6]
b2l = [f"v_lshlrev_b32 v{V_B2 + r}, 16, v{V_B2L} ; @r:ldS1b" for r in range(4)]
def tr_reads(blk):
    t = A_TR + 32 * (blk & 1)
    return [f"ds_read_b64_tr_b16 {a(t + 4 * dt + 2 * h2, 2)}, v{V_TA + dt} offset:{SLOT[blk & 3] * 8192 + 512 * h2} ; @r:ldH{blk}"
            for dt in range(8) for h2 in range(2)]


if EARLY:
    PREP += [xw(1, 6), xw(2, 6)] + left[:4] + [xw(1, 7)] + left[4:8] + [xw(2, 7)] + left[8:] + b2l
    PREP += ["buffer_clump_st s32 ; h0w @w:ldH0"] + (f0_reads() if ZF else f_reads(0)) + tr_reads(0)[:6]
else:
    PREP += [xw(1, 6), xw(2, 6)] + ["buffer_clump_st s32 ; h0w @w:ldH0"] + (f0_reads() if ZF else f_reads(0)) + left[:4] + [xw(1, 7)] + left[4:8] + [xw(2, 7)] + left[8:] + b2l
PREP += xbar()


def p_e(p):
    c = AC[p & 3]
    ex = [f"v_exp_f32 v{c + r}, v{c + r}" for r in range(16)]
    ex.append(boost(f"{M32} {v(c, 16)}, {a(A_HALF, 4)}, {a(ONES[0], 4)}, {v(c, 16)}"))
    return ex


def p_r(p):
    rc = []
    j = p & 3
    c = AC[j]
    for k in range(8):
        rc.append(f"v_rcp_f32 v{c + 2 * k}, v{c + 2 * k}")
        rc.append(f"v_rcp_f32 v{c + 2 * k + 1}, v{c + 2 * k + 1}")
        rc.append(f"v_cvt_pk_bf16_f32 v{V_HP + k}, v{c + 2 * k}, v{c + 2 * k + 1}")
        if k % 4 == 3:
            u = k // 4
            q = 2 * j + u
            rc.append(boost(f"{M16} {v(V_SC, 4)}, {v(V_HP + 4 * u, 4)}, {a(A_W2 + 4 * q, 4)}, {v(V_B2, 4) if q == 0 else v(V_SC, 4)}"))
    return rc


def tr_reads(blk):
    t = A_TR + 32 * (blk & 1)
    return [f"ds_read_b64_tr_b16 {a(t + 4 * dt + 2 * h2, 2)}, v{V_TA + dt} offset:{SLOT[blk & 3] * 8192 + 512 * h2} ; @r:ldH{blk}"
            for dt in range(8) for h2 in range(2)]


def fin(blk):
    o = [f"v_mul_legacy_f32 v{V_SC + r}, v{V_SC + r}, v{V_MVAL + r}" for r in range(4)]
    o.append(f"v_cvt_pk_bf16_f32 v{V_APK}, v{V_SC}, v{V_SC + 1}")
    o.append(f"v_cvt_pk_bf16_f32 v{V_APK + 1}, v{V_SC + 2}, v{V_SC + 3}")
    o.append(f"v_mov_b32_dpp v{V_APK + 2}, v{V_APK} quad_perm:[1,0,3,2] row_mask:0xf bank_mask:0xf")
    o.append(f"v_mov_b32_dpp v{V_APK + 3}, v{V_APK + 1} quad_perm:[1,0,3,2] row_mask:0xf bank_mask:0xf")
    t = A_TR + 32 * (blk & 1)
    g2 = [f"{M16} {a(A_O + 4 * dt, 4)}, {v(V_APK, 4)}, {a(t + 4 * dt, 4)}, {'0' if blk == 0 else a(A_O + 4 * dt, 4)}" for dt in range(8)]
    return o, g2


FJ = int(OPT.get('fj', 3))
FAST = int(OPT.get('fast', 1))


def step(sig, nb=4):
    last = 4 * nb - 1
    ok = lambda p: 0 <= p <= last
    j, blk = sig & 3, sig >> 2
    o = []
    x = []
    if sig == 0:
        x = [xr(1, k) for k in range(8)] + [f"ds_read_b32 v{V_CPK + j_}, v{P_CW} offset:{(4 - j_) * 512 + 4 * j_}" for j_ in (1, 2, 3)]
        x += [xr(2, k) for k in range(8)]
        o += x
        x = []
    elif sig == 1:
        o += xbar()
        x = [xw(3, k) for k in range(8)]
    elif sig == 2:
        o += xbar()
        x = [xr(3, k) for k in range(8)]
    elif sig == 4 - FAST:
        o += xbar()
    elif j == 0 and sig:
        o += sstamp()
    gm = p_g(sig) if ok(sig) else []
    ex = p_e(sig - 1) if ok(sig - 1) else []
    rc = p_r(sig - 2) if ok(sig - 2) else []
    ds = list(x)
    if ok(sig):
        tcut = {1: (0, 4, 8, 12, 16), 2: (0, 6, 12, 14, 16), 3: (0, 6, 11, 16, 16)}[FJ]
        ds += tr_reads(blk)[tcut[j]:tcut[j + 1]] if not (EARLY and sig == 0) else []
        if blk + 1 < nb and j >= FJ:
            if j == FJ:
                o.append(vwait(f"H{blk + 1}"))
            cut = {1: (0, 0, 3, 6, 8), 2: (0, 0, 0, 5, 8), 3: (0, 0, 0, 0, 8)}[FJ]
            ds = f_reads(blk + 1)[cut[j]:cut[j + 1]] + ds
        if j == 3:
            ds.append(f"ds_read_b128 {v(V_MVAL, 4)}, v{V_MVA} offset:{4096 + blk * 128}")
    fv, g2 = fin(blk - 1) if (j == 1 and blk >= 1) else ([], [])
    ld = []
    if FAST:
        B = (sig + 9) >> 2
        jj = (sig + 9) & 3
        if sig in (1, 2):
            ld = hist_load(2, sig - 1)
        elif sig >= 3 and B < nb:
            ld = hist_load(B, jj >> 1, 2 * (jj & 1), 2 * (jj & 1) + 2)
    elif blk + 2 < nb:
        ld = hist_load(blk + 2, j >> 1, 2 * (j & 1), 2 * (j & 1) + 2) if sig > 1 else (hist_load(2, 0) if sig == 1 else [])
    va = mixg(rc + ex[:6] + fv + ex[6:], ld, 12, 2)
    o += gm + mix(va, ds, max(1, min(5, len(va) // max(1, len(ds)))), 0) + g2
    return o


HEAD = list(PREP)
SX = 8 - FAST
for sig in range(0, SX):
    HEAD += step(sig)
emit_sched(HEAD, "head", trace=VERB > 3)
A("s_waitcnt lgkmcnt(0)")
A("s_cmp_gt_u32 s13, 128")
A("s_cbranch_scc1 L_wrap")
A("L_tail:")
vm_end = list(vm_log)
TAIL = []
for sig in range(SX, 18):
    TAIL += step(sig)
TAIL += ["v_mbcnt_lo_u32_b32 v66, -1, 0", "v_mbcnt_hi_u32_b32 v66, -1, v66", "v_lshlrev_b32 v66, 1, v66"]
emit_sched(TAIL, "tail", trace=VERB == 3)
for g in range(4):
    A(f"s_mov_b32 exec_lo, {hex(0xffff << (16 * g) if g < 2 else 0)}")
    A(f"s_mov_b32 exec_hi, {hex(0xffff << (16 * (g - 2)) if g >= 2 else 0)}")
    A(f"v_accvgpr_read_b32 v64, {a(A_O + 4 * g)}")
    A(f"v_accvgpr_read_b32 v65, {a(A_O + 4 * (g + 4))}")
A("s_mov_b64 exec, -1")
A("v_cvt_pk_bf16_f32 v64, v64, v65")
A(f"buffer_store_short v64, v66, {s(SRD_O, 4)}, 0 offen")
A(f"buffer_store_short_d16_hi v64, v66, {s(SRD_O, 4)}, 0 offen offset:128")
if STAMP:
    A("s_waitcnt vmcnt(0)")
    stamp(True, True)
    stamp(True, True)
    nstamp[0] -= 1
    A("s_lshl2_add_u32 s7, s2, s5")
    A("s_lshl_b32 s7, s7, 8")
    A("v_mbcnt_lo_u32_b32 v20, -1, 0")
    A("v_mbcnt_hi_u32_b32 v20, -1, v20")
    A("v_lshl_add_u32 v20, v20, 2, s7")
    A(f"global_store_dword v20, v{V_ST}, s[84:85]")
    print("nstamps", nstamp[0])
if SPIN:
    A("L_spin:")
    A("s_memrealtime s[98:99]")
    A("s_waitcnt lgkmcnt(0)")
    A("s_sub_u32 s98, s98, s96")
    A(f"s_cmp_lt_u32 s98, {SPIN}")
    A("s_cbranch_scc1 L_spin")
A("L_end:")
A("s_endpgm")
A("L_codeend:")
A("L_wrap:")
STAMP = 0
vm_log[:] = vm_end
WR = []
for sig in range(SX, SX + 16):
    WR += step(sig, nb=8)
emit_sched(WR, "wrap")
A("s_waitcnt lgkmcnt(0)")
A(f"v_add_u32 v{V_MVA}, 0x200, v{V_MVA}")
A("s_branch L_tail")

auto_lgkm(A)
npad = A.pad(verbose=VERB > 1)
FP = int(OPT.get("fp", 0))
if FP:
    fs = int(OPT.get("fs", 12))
    new, k, cnt = [], 0, 0
    log = []
    for x in A.ins:
        if x.label == "L_end":
            new += [Ins(t) for t in ("s_waitcnt vmcnt(0) lgkmcnt(0)", "s_load_dwordx2 s[84:85], s[0:1], 72", "s_lshl2_add_u32 s7, s2, s5", "s_lshl_b32 s7, s7, 8",
                                     "v_mbcnt_lo_u32_b32 v20, -1, 0", "v_mbcnt_hi_u32_b32 v20, -1, v20", "v_lshl_add_u32 v20, v20, 2, s7",
                                     "s_waitcnt lgkmcnt(0)", f"global_store_dword v20, v{V_ST}, s[84:85]")]
        if x.kind not in ("label", "directive"):
            if cnt >= fs and (cnt - fs) % FP == 0 and k < 66:
                if k >= 2:
                    new.append(Ins(f"v_writelane_b32 v{V_ST}, s{86 + 2 * ((k - 2) % 4)}, {k - 2}"))
                if k < 64:
                    new.append(Ins(f"s_memtime s[{86 + 2 * (k % 4)}:{87 + 2 * (k % 4)}]"))
                    log.append([])
                k += 1
            cnt += 1
            if log and k <= 64:
                log[-1].append(x.text.split(";")[0].strip())
        new.append(x)
    A.ins = new
    import json
    json.dump(log, open(sys.argv[1] + ".log", "w"))

ref = open("cdna_kernels/%s.s.ref" % NAME).read().split("\n")
head_ = [l for l in ref if l.startswith(";") and "@launch" not in l and "Override" not in l and "grid=ceil" not in l]
out = "\n".join(head_) + "\n"
out += f"; @launch grid=(256,1,1) block=(256,1,1) lds={LDS_BYTES}\n"
out += '.amdgcn_target "amdgcn-amd-amdhsa--gfx950"\n.text\n'
out += f".globl {NAME}_kernel\n.p2align 8\n.type {NAME}_kernel,@function\n"
out += "\n".join(l.split(";")[0].rstrip() for l in A.text().split("\n")) + "\n"
out += f""".section .rodata,"a"
.p2align 6
.amdhsa_kernel {NAME}_kernel
  .amdhsa_next_free_vgpr {NVG + NAG}
  .amdhsa_next_free_sgpr 102
  .amdhsa_accum_offset {NVG}
  .amdhsa_group_segment_fixed_size 0
  .amdhsa_kernarg_size 80
  .amdhsa_user_sgpr_count 2
  .amdhsa_user_sgpr_kernarg_segment_ptr 1
  .amdhsa_system_sgpr_workgroup_id_x 1
.end_amdhsa_kernel
"""
open(sys.argv[1], "w").write(out)
print(f"wrote {sys.argv[1]}: {len(A.ins)} lines, {npad} pad states")
```

```python
import sys
import os

sys.path.insert(0, os.path.dirname(os.path.abspath(__file__)))
import asmlib
from asmlib import Asm, Ins, schedule, auto_lgkm

NAME = "standalone__sequential_behavior_din__recsys"
OPT = dict(a.split("=") if "=" in a else (a, "1") for a in sys.argv[2:])
STAMP = int(OPT.get("stamp", 0))
HIST_POL = OPT.get("hpol", "nt").replace("+", " ").replace("none", "")
VERB = int(OPT.get("v", 0))
POL = lambda k: OPT.get(k, "none").replace("+", " ").replace("none", "")
asmlib.DS_LAT = int(OPT.get('dslat', 160))
asmlib.LDS_OCC = int(OPT.get('ldsocc', 3))
asmlib.TA_OCC = int(OPT.get('taocc', 80))
asmlib.FENCE_LAT = int(OPT.get('flat', 110))
asmlib.WR_COST = 27
asmlib.DS_COST = 7
DIST = int(OPT.get("dist", 6))

N0 = 131072
LROW, LMSK = N0, N0 + 4096
TCP = N0 + 8192
W2C = TCP + 1024
DTAB = W2C + 1024
CPKB = DTAB + 8192
LDS_BYTES = CPKB + 4096
OOB = 0x100000

NVG = 256
V_EN = 0
V_FA = 8
V_TA = 16
V_CPK = 60
V_B2 = 28
V_SC = 32
V_MVAL = 36
V_APK = 40
V_HP = 44
V_MVA, V_ENA, V_K0, V_ST = 52, 53, 54, 55
V_DMA = 56
P_TRS, P_DG, P_TF, V_B1, P_CW = 32, 33, 35, 40, 41
P_XW, P_XR = 36, 36
AC = (64, 80, 96, 112)
WE = 128
A_F = 0
A_TR = 64
A_W2 = 128
A_O = 160
A_HALF = 192
ONES = {2: 194, 0: 196, 3: 198, 1: 200}
V_SELH, V_SELL = 24, 28
V_B2L = 42
A_CACC = 212
V_CACC = 44
A_RT = 0
A_RS = 204
A_TFA = 160
NAG = 256
SLOT = (0, 1, 2, 3)


def we(j, ks):
    return WE + 32 * j + 4 * ks


def v(i, n=1):
    return f"v{i}" if n == 1 else f"v[{i}:{i + n - 1}]"


def a(i, n=1):
    return f"a{i}" if n == 1 else f"a[{i}:{i + n - 1}]"


def s(i, n=1):
    return f"s{i}" if n == 1 else f"s[{i}:{i + n - 1}]"


M32 = "v_mfma_f32_32x32x16_bf16"
M16 = "v_mfma_f32_16x16x32_bf16"

A = Asm()
nstamp = [0]
CLUMPS = {}


pend = []


def stamp_lines(flush):
    out = []
    if flush:
        for k in pend:
            r = 86 + 4 * (k % 4)
            out += [f"v_writelane_b32 v{V_ST}, s{r}, {k}", f"v_writelane_b32 v{V_ST}, s{r + 2}, {32 + k}"]
        pend.clear()
    k = nstamp[0]
    nstamp[0] += 1
    assert len(pend) < 4
    pend.append(k)
    r = 86 + 4 * (k % 4)
    return out + [f"s_memrealtime s[{r}:{r + 1}]", f"s_memtime s[{r + 2}:{r + 3}]"]


LITE = STAMP == 2


def stamp(flush=False, force=False):
    if STAMP and (not LITE or force or nstamp[0] == 0):
        if flush:
            A("s_waitcnt lgkmcnt(0)")
        A.extend(stamp_lines(flush))


def sstamp():
    if not STAMP or LITE or int(OPT.get("prof", 0)):
        return []
    k = nstamp[0]
    CLUMPS[f"st{k}"] = stamp_lines(True)
    return [f"buffer_clump_store v{V_ST}"]


vm_log = []


def vm(text, tag):
    vm_log.append(tag)
    return text


def vmcount(tag):
    last = max(i for i, t in enumerate(vm_log) if t == tag)
    n = len(vm_log) - 1 - last
    assert n <= 63
    return n


def emit_sched(lines, name, **kw):
    o, t = schedule(lines, mode="order", **kw)
    if VERB:
        print(f"region {name}: {len(o)} instrs, model {t} cycles")
    PROF = int(OPT.get("prof", 0))
    for li, l in enumerate(o):
        if PROF and name == "head" and li % PROF == 0 and nstamp[0] < 30:
            A.extend(stamp_lines(True))
            print("prof", nstamp[0] - 1, li, l[:60])
        if l.startswith(("buffer_clump", "ds_clump")):
            A.extend(CLUMPS[l.split(";")[1].split()[0]])
        else:
            A(l if ("@def" in l or "@use" in l) else l.split(";")[0])


def mix(main, extra, every, start=0):
    out = []
    extra = list(extra)
    for i, l in enumerate(main):
        if i >= start and (i - start) % every == 0 and extra:
            out.append(extra.pop(0))
        out.append(l)
    return out + extra


def mixg(main, groups, every, start=0):
    out = []
    groups = list(groups)
    for i, l in enumerate(main):
        if i >= start and (i - start) % every == 0 and groups:
            out += groups.pop(0)
        out.append(l)
    for g_ in groups:
        out += g_
    return out


def sbarrier(tag, lgkm0=False, extra=""):
    o = []
    w = (f"vmcnt({vmcount(tag)}) " if tag else "") + ("lgkmcnt(0)" if lgkm0 else "")
    if w:
        o.append(f"s_waitcnt {w}")
    return o + [f"s_barrier ; @fence {extra}"]


SRD_H, SRD_M, SRD_T, SRD_W1, SRD_W2, SRD_O = 36, 40, 44, 48, 56, 60
SOFF = {0: "s52", 1: "s53", 2: "s54", 3: "0"}
SQ = {0: "0", 1: "32", 2: "64", 3: "s55", 4: "s72", 5: "s73", 6: "s74", 7: "s11"}
SST = {0: "0", 1: "s6", 2: "s10", 3: "s15"}
ROW0 = (0, 256, 128, 384)


def w1_piece(st, k):
    out = []
    if k % 4 == 0:
        out.append(f"s_add_u32 m0, s14, {st * 8192 + (k >> 2) * 4096}")
    out.append(vm(f"buffer_load_dwordx4 v{V_DMA + k}, {s(SRD_W1, 4)}, {SST[st]} offen offset:{(k & 3) * 1024} {POL('wpol')} lds", f"S{st}{'ab'[k >> 2]}"))
    return out


def hist_load(blk, half, lo=0, hi=4):
    en = V_EN + 4 * half
    out = [[f"ds_read_b128 {v(en, 4)}, v{V_ENA} offset:{blk * 128 + half * 16} ; @r:list"]] if lo == 0 else []
    for i in range(lo, hi):
        q = 4 * half + i
        g = [f"s_add_u32 m0, s14, {SLOT[blk & 3] * 8192 + half * 4096}"] if i == 0 else []
        g += [f"v_xad_u32 v{en + i}, v{V_K0}, {SQ[q]}, v{en + i}",
              vm(f"buffer_load_dwordx4 v{en + i}, {s(SRD_H, 4)}, {SOFF[i]} offen offset:{1024 * i} {HIST_POL} lds", f"H{blk}")]
        out.append(g)
    return out


L, G_, HI, N32, B0, B1, PI, GA, M2, M3, L3, VOOB, Q2 = (f"v{r}" for r in range(112, 125))
t0, t1, t2, t3 = "v108", "v109", "v110", "v111"
A(f"{NAME}_kernel:")
A("s_cmp_ge_u32 s2, 256")
A("s_cbranch_scc1 L_end")
A("s_load_dwordx16 s[16:31], s[0:1], 0")
if STAMP:
    A("s_load_dwordx2 s[84:85], s[0:1], 72")
SPIN = int(OPT.get("spin", 0))
if SPIN:
    A("s_memrealtime s[96:97]")
A("s_getpc_b64 s[12:13]")
A("L_pc:")
A(f"v_lshrrev_b32 {t0}, 6, v0")
A(f"v_and_b32 {L}, 63, v0")
A(f"v_readfirstlane_b32 s5, {t0}")
A(f"v_and_b32 {B0}, 1, v0")
A("s_bfe_u32 s7, s2, 0x50003")
A("s_lshl2_add_u32 s8, s7, s5")
A("s_lshl_b32 s7, s8, 8")
A(f"v_lshl_add_u32 {t0}, {B0}, 7, s7")
A(f"v_min_u32 {t0}, L_codeend-L_pc-4, {t0}")
A(vm(f"global_load_dword v128, {t0}, s[12:13] {POL('ppol')}", "pf"))
stamp()
A(f"v_and_b32 {t1}, 7, v0")
A("s_lshl_b32 s7, s8, 10")
A(f"v_lshl_add_u32 {t1}, {t1}, 7, s7")
A(f"v_and_b32 {L3}, 3, v0")
A("s_lshl_b32 s14, s5, 15")
for r, n in ((SRD_M, 400), (SRD_T, 1024), (SRD_W1, 131072)):
    A(f"s_mov_b32 s{r + 2}, {n}")
    A(f"s_mov_b32 s{r + 3}, 0x20000")
A(f"v_lshrrev_b32 {t2}, 2, {L}")
A(f"v_lshlrev_b32 {t2}, 8, {t2}")
A(f"v_lshl_add_u32 {t2}, {L3}, 4, {t2}")
A("s_lshl_b32 s80, s5, 6")
A(f"v_add_u32 v{V_DMA}, s80, {t2}")
for k in range(1, 8):
    A(f"v_add_u32 v{V_DMA + k}, {ROW0[k >> 1] * 256 + (k & 1) * 4096 - (k & 3) * 1024}, v{V_DMA}")
A("s_lshl_b32 s7, s5, 8")
A(f"v_lshl_add_u32 {t2}, {L}, 2, s7")
A(f"v_lshlrev_b32 {t3}, 3, {L}")
A("s_lshl2_add_u32 s4, s2, s5")
A("s_mul_i32 s8, s4, 400")
A("s_lshl_b32 s9, s2, 10")
A("s_movk_i32 s6, 8192")
A("s_movk_i32 s10, 16384")
A("s_movk_i32 s15, 24576")
A(f"s_add_u32 m0, s7, {TCP}")
A("s_waitcnt lgkmcnt(0)")
A(vm(f"global_load_dword v129, {t1}, s[22:23] {POL('ppol')}", "pf"))
if int(OPT.get("tlb", 0)):
    A("s_lshl2_add_u32 s7, s2, s5")
    A("s_mul_i32 s7, s7, 51200")
    A("v_mov_b32 v168, s7")
    A(vm("global_load_dword v169, v168, s[18:19] nt", "pf"))
    A("v_mov_b32 v170, s9")
    A(vm("global_load_dword v171, v170, s[30:31] nt", "pf"))
A(f"s_add_u32 s{SRD_M}, s20, s8")
A(f"s_addc_u32 s{SRD_M + 1}, s21, 0")
A(f"s_add_u32 s{SRD_T}, s16, s9")
A(f"s_addc_u32 s{SRD_T + 1}, s17, 0")
A(vm(f"buffer_load_dword v132, {t2}, {s(SRD_T, 4)}, 0 offen {POL('spol')}", "sm"))
A(vm(f"buffer_load_dwordx2 v[130:131], {t3}, {s(SRD_M, 4)}, 0 offen {POL('spol')}", "sm"))
A(f"s_mov_b32 s{SRD_W1}, s22")
A(f"s_mov_b32 s{SRD_W1 + 1}, s23")
A(vm(f"buffer_load_dword {t2}, {s(SRD_T, 4)}, 0 offen {POL('spol')} lds", "sm"))
A(f"s_mov_b32 m0, {W2C}")
A(f"v_and_b32 {t1}, 15, {L}")
A(f"v_lshlrev_b32 {t1}, 4, {t1}")
A(vm(f"global_load_lds_dwordx4 {t1}, s[26:27]", "sm"))
pieces = [(st, k) for st in range(4) for k in range(8)]
NPRE = int(OPT.get("npre", 8))
stamp()


def take(n):
    global pieces
    r = [w1_piece(st, k) for st, k in pieces[:n]]
    pieces = pieces[n:]
    return r


u0, u1, u2 = "v125", "v126", "v127"
CB = f"""v_lshrrev_b32 {HI}, 5, {L}
v_bfe_u32 {B1}, {L}, 1, 1
v_bfe_u32 {GA}, {L}, 4, 1
v_bfe_u32 {M2}, {L}, 2, 1
v_bfe_u32 {M3}, {L}, 3, 1
v_bfe_u32 {Q2}, {L}, 2, 2
v_lshrrev_b32 {G_}, 4, {L}
v_and_b32 {N32}, 31, {L}
v_and_b32 {PI}, 0x13, {L}
v_lshl_or_b32 {PI}, {M2}, 3, {PI}
v_lshl_or_b32 {PI}, {M3}, 2, {PI}
v_cmp_eq_u32 s[76:77], {M2}, {GA}
v_cmp_eq_u32 s[78:79], {M2}, {HI}
v_mov_b32 {VOOB}, {OOB}
ds_read_b128 {a(A_HALF, 4)}, {VOOB}
ds_read_b128 {a(A_HALF + 4, 4)}, {VOOB}
ds_read_b128 {a(A_HALF + 8, 4)}, {VOOB}
s_mov_b32 s33, 0xbfb8aa3b
v_mov_b32 v136, 0
v_mov_b32 v137, 0
v_mov_b32 v138, 0
v_mov_b32 v139, 0
v_mov_b32 v140, 2.0
v_mov_b32 v141, 2.0
v_mov_b32 v142, 2.0
v_mov_b32 v143, 2.0
s_lshl_b32 s75, s5, 10
s_add_u32 s75, s75, {LROW}
s_lshl_b32 s81, s5, 11
s_add_u32 s81, s81, {DTAB}
v_lshl_add_u32 v160, {L}, 4, s75
v_lshl_add_u32 v161, {L}, 4, s81
ds_write_b128 v161, v[136:139]
ds_write_b128 v161, v[136:139] offset:1024
ds_write_b128 v160, v[140:143]
ds_write_b128 v160, v[136:139] offset:4096
v_lshl_add_u32 v133, {L}, 5, s81
v_lshl_add_u32 v133, {L3}, 2, v133
v_lshlrev_b32 {t0}, 5, {GA}
v_lshl_add_u32 {t0}, {B0}, 4, {t0}
v_lshl_add_u32 {t0}, {B1}, 3, {t0}
v_lshl_add_u32 {t0}, {Q2}, 6, {t0}
v_lshl_add_u32 {t0}, {HI}, 9, {t0}
v_add_u32 v{P_TRS}, s14, {t0}
v_and_b32 {t0}, 15, {PI}
v_lshlrev_b32 {t0}, 4, {t0}
v_add_u32 {t0}, {DTAB}, {t0}
v_add_u32 {t1}, s5, {GA}
v_and_b32 {t1}, 3, {t1}
v_xor_b32 {t2}, 2, {t1}
v_lshl_add_u32 {t1}, {t1}, 11, {t0}
v_lshl_add_u32 {t2}, {t2}, 11, {t0}
v_cndmask_b32 v{P_DG}, {VOOB}, {t1}, s[78:79]
v_cndmask_b32 v{P_DG + 1}, {VOOB}, {t2}, s[78:79]
v_add_u32 {t0}, s5, {L}
v_and_b32 {t0}, 3, {t0}
v_lshlrev_b32 {t0}, 8, {t0}
v_lshl_add_u32 {t0}, {HI}, 4, {t0}
v_add_u32 {t0}, {TCP}, {t0}
v_cndmask_b32 v{P_TF}, {VOOB}, {t0}, s[76:77]
v_lshlrev_b32 {t0}, 4, {B0}
v_mov_b32 {t1}, 0xffff
v_lshlrev_b32 {t0}, {t0}, {t1}
v_cndmask_b32 {t0}, 0, {t0}, s[78:79]
v_lshl_or_b32 {t1}, {M3}, 1, {B1}
v_and_b32 {t2}, 0xbfb9bfb9, {t0}
v_and_b32 {t3}, 0x3b2c3b2c, {t0}""".split("\n")
for x in range(4):
    CB.append(f"v_cmp_eq_u32 {s(64 + 2 * x, 2)}, {x}, {t1}")
for x in range(4):
    CB.append(f"v_cndmask_b32 v{V_SELH + x}, 0, {t2}, {s(64 + 2 * x, 2)}")
    CB.append(f"v_cndmask_b32 v{V_SELL + x}, 0, {t3}, {s(64 + 2 * x, 2)}")
CB += f"""v_lshlrev_b32 v152, 10, {L}
v_add_u32 v153, 0x100, v152
v_add_u32 v154, 0x200, v152
v_add_u32 v155, 0x300, v152""".split("\n")

CC = f"""s_mul_i32 s8, s4, 51200
s_sub_u32 s8, s8, 3072
s_subb_u32 s7, 0, 0
s_add_u32 s{SRD_H}, s18, s8
s_addc_u32 s{SRD_H + 1}, s19, s7
s_lshl_b32 s8, s4, 8
s_add_u32 s{SRD_O}, s30, s8
s_addc_u32 s{SRD_O + 1}, s31, 0
s_mov_b32 s{SRD_H + 2}, {51200 + 3072}
s_mov_b32 s{SRD_H + 3}, 0x20000
s_mov_b32 s{SRD_O + 2}, 256
s_mov_b32 s{SRD_O + 3}, 0x20000""".split("\n")
for i_ in range(3):
    CC.append(f"s_movk_i32 {SOFF[i_]}, {3072 - 1024 * i_}")
for q in range(3, 8):
    CC.append(f"s_movk_i32 {SQ[q]}, {q << 5}")
CC += f"""v_lshl_add_u32 v{V_ENA}, {G_}, 5, s75
v_and_b32 {t0}, 15, {L}
v_xor_b32 {t0}, {GA}, {t0}
v_lshlrev_b32 v{V_K0}, 4, {t0}
v_and_b32 {u0}, 7, {L}
v_lshl_or_b32 {u1}, {u0}, 1, {M3}
v_xor_b32 {u1}, {u1}, {HI}
v_lshlrev_b32 {u1}, 4, {u1}
v_lshl_add_u32 {u1}, {u0}, 10, {u1}
v_lshrrev_b32 {u2}, 3, {N32}
v_lshl_add_u32 {u1}, {u2}, 8, {u1}
v_add_u32 v{V_FA}, s14, {u1}""".split("\n")
for ks in range(1, 8):
    CC.append(f"v_xor_b32 v{V_FA + ks}, {SQ[ks]}, v{V_FA}")
CC += f"""v_bfe_u32 {u0}, {L}, 2, 3
v_lshl_or_b32 {u1}, {u0}, 1, {HI}
v_xor_b32 {u1}, {u1}, {B1}
v_lshlrev_b32 {u1}, 4, {u1}
v_lshl_add_u32 {u1}, {u0}, 10, {u1}
v_lshl_add_u32 {u1}, {HI}, 8, {u1}
v_lshl_add_u32 {u1}, {B0}, 3, {u1}
v_add_u32 v{V_TA}, s14, {u1}""".split("\n")
for dt in range(1, 8):
    CC.append(f"v_xor_b32 v{V_TA + dt}, {SQ[dt]}, v{V_TA}")
CC += f"""v_lshlrev_b32 {u0}, 6, {B0}
v_lshl_add_u32 {u0}, {G_}, 4, {u0}
v_add_u32 v{V_MVA}, s75, {u0}
v_lshl_add_u32 v{P_XW}, {L}, 4, s14
s_mov_b32 s7, 0x1ffff
v_add_u32 v{P_XR + 1}, 0x18000, v{P_XW}
v_xor_b32 v{P_XR + 2}, 0x10000, v{P_XW}
v_add_u32 v{P_XR + 3}, 0x8000, v{P_XW}
v_and_b32 v{P_XR + 1}, s7, v{P_XR + 1}
v_and_b32 v{P_XR + 3}, s7, v{P_XR + 3}
s_lshl_b32 s7, s5, 9
s_add_u32 s7, s7, {CPKB}
v_lshl_add_u32 v{P_CW}, {N32}, 4, s7
v_cmp_eq_u32 vcc, {GA}, {B0}
s_add_u32 s7, s80, {W2C}
v_lshl_add_u32 {u0}, {HI}, 4, s7
v_cndmask_b32 v134, {VOOB}, {u0}, vcc
v_cmp_gt_u32 vcc, 32, {L}
v_mov_b32 {u0}, 0x3f803f80
v_mov_b32 {u1}, 0x3f003f00
v_cndmask_b32 {u0}, 0, {u0}, vcc
s_waitcnt lgkmcnt(0)
v_accvgpr_write_b32 {a(A_HALF)}, {u1}
v_accvgpr_write_b32 {a(A_HALF + 4)}, {u0}
v_accvgpr_write_b32 {a(A_HALF + 9)}, {u0}""".split("\n")
CE = int(OPT.get("ce", 5))
NE = int(OPT.get("ne", 32))
wi = max(i for i, x in enumerate(A.ins) if x.text.startswith("s_waitcnt lgkmcnt(0)"))
wrs = [l for l in CB if l.startswith("ds_write_b128")]
CBn = [l for l in CB if not l.startswith("ds_write_b128")]
early, CBn = CBn[:NE], CBn[NE:]
A.ins[wi:wi] = [Ins(l) for l in early]
A.extend([f"v_lshl_add_u32 {u0}, {PI}, 1, s80",
          vm(f"global_load_ushort v{V_B1}, {u0}, s[24:25]", "sm2"), vm(f"global_load_ushort v{V_B2L}, v136, s[28:29]", "sm2")])
rest = mixg(CBn, take(NPRE), CE, 0) + CC[:12]
A.extend(rest + mix(CC[12:], wrs, 12, 2))
stamp()

TP = """v_and_b32 v135, 0xffff0000, v132
v_lshlrev_b32 v132, 16, v132
v_mul_f32 v132, s33, v132
v_mul_f32 v135, s33, v135
v_cvt_pk_bf16_f32 v132, v132, v135
ds_write_b16 v133, v132
ds_write_b16_d16_hi v133, v132 offset:18 ; @def:tab""".split("\n")
RL = """v_lshlrev_b32 v156, 16, v130
v_and_b32 v157, 0xffff0000, v130
v_lshlrev_b32 v158, 16, v131
v_and_b32 v159, 0xffff0000, v131""".split("\n")
for j in range(4):
    RL.append(f"v_cmp_neq_f32 {s(64 + 2 * j, 2)}, 0, v{156 + j}")
RL += """v_mbcnt_lo_u32_b32 v148, s64, 0
s_bcnt1_i32_b64 s12, s[64:65]
v_mbcnt_hi_u32_b32 v148, s65, v148
s_bcnt1_i32_b64 s13, s[66:67]
v_mbcnt_lo_u32_b32 v148, s66, v148
s_bcnt1_i32_b64 s8, s[68:69]
v_mbcnt_hi_u32_b32 v148, s67, v148
s_bcnt1_i32_b64 s9, s[70:71]
v_mbcnt_lo_u32_b32 v148, s68, v148
s_add_u32 s12, s12, s13
v_mbcnt_hi_u32_b32 v148, s69, v148
s_add_u32 s8, s8, s9
v_mbcnt_lo_u32_b32 v148, s70, v148
s_add_u32 s13, s12, s8
v_mbcnt_hi_u32_b32 v148, s71, v148
s_sub_u32 s32, 0x100, s13
s_and_b32 s32, s32, 127
v_add_u32 v148, s32, v148
v_addc_co_u32 v149, s[78:79], v148, 0, s[64:65]
v_addc_co_u32 v150, s[78:79], v149, 0, s[66:67]
v_addc_co_u32 v151, s[78:79], v150, 0, s[68:69]""".split("\n")
RL += [f"v_and_or_b32 v{144 + j}, v{148 + j}, 28, s75" for j in range(4)]
RL += [f"v_and_b32 v{162 + j}, 3, v{148 + j}" for j in range(4)]
RL += [f"v_lshrrev_b32 v{148 + j}, 5, v{148 + j}" for j in range(4)]
RL += [f"v_lshl_add_u32 v{144 + j}, v{162 + j}, 5, v{144 + j}" for j in range(4)]
RL += [f"v_lshl_add_u32 v{148 + j}, v{148 + j}, 7, v{144 + j}" for j in range(4)]
if int(OPT.get("oobw", 0)):
    for j in range(4):
        RL.append(f"v_cndmask_b32 v{148 + j}, v140, v{148 + j}, {s(64 + 2 * j, 2)}")
    for j in range(4):
        RL.append(f"ds_write2st64_b32 v{148 + j}, v{152 + j}, v{156 + j} offset0:0 offset1:16 ; @w:list")
else:
    CLUMPS["lw"] = []
    for j in range(4):
        CLUMPS["lw"] += [f"s_mov_b64 exec, {s(64 + 2 * j, 2)}", f"ds_write2st64_b32 v{148 + j}, v{152 + j}, v{156 + j} offset0:0 offset1:16"]
    CLUMPS["lw"].append("s_mov_b64 exec, -1")
    RL.append("ds_clump_write v[148:159], s[64:71]")
W2R = [f"ds_read_b128 {a(A_W2 + 4 * q, 4)}, v134 offset:{(4 - (q >> 1)) * 64 + 32 * (q & 1)}" for q in range(8)]


def kstep(ks):
    st, u = ks >> 1, ks & 1
    rt = A_RT + 16 * ks
    RA, RC, RB, RD_, TF, DG = rt, rt + 4, rt + 8, rt + 12, A_TFA + 4 * ks, A_RS + 8 * (ks % 3)
    base = st * 8192 + u * 1024
    tr = lambda reg, off, tag: [f"ds_read_b64_tr_b16 {a(reg + 2 * j2, 2)}, v{P_TRS} offset:{base + off + j2 * 256} ; @r:ldS{st}{tag} @r:reg{st} @x:rd{st} @def:rd{st}" for j2 in range(2)]
    r1 = tr(RA, 0, "a") + tr(RC, 2048, "a")
    r2 = tr(RD_, 6144, "b") + tr(RB, 4096, "b")
    r3 = [f"ds_read_b128 {a(DG + 4 * p_, 4)}, v{P_DG + p_} offset:{ks * 256} ; @r:tab" for p_ in range(2)]
    r3.append(f"ds_read_b128 {a(TF, 4)}, v{P_TF} offset:{32 * ks} ; @r:tab")
    pt = AC[2 + (ks & 1)]
    d0 = AC[ks & 1]
    pm = [f"{M32} {v(pt, 16)}, {v(V_SELH, 4)}, {a(RA, 4)}, 0",
          f"{M32} {v(pt, 16)}, {v(V_SELH, 4)}, {a(RC, 4)}, {v(pt, 16)}",
          f"{M32} {v(pt, 16)}, {v(V_SELL, 4)}, {a(RA, 4)}, {v(pt, 16)}",
          f"{M32} {v(pt, 16)}, {v(V_SELL, 4)}, {a(RC, 4)}, {v(pt, 16)}"]
    dm = [f"{M32} {v(d0, 16)}, {a(DG, 4)}, {a(RD_, 4)}, {v(pt, 16)}",
          f"{M32} {v(pt, 16)}, {a(DG + 4, 4)}, {a(RD_, 4)}, {v(pt, 16)}"]
    cm = [f"{M16} {v(V_CACC, 4)}, {a(TF, 4)}, {a(RC, 4)}, {'0' if ks == 0 else v(V_CACC, 4)}",
          f"{M16} {v(V_CACC + 4, 4)}, {a(TF, 4)}, {a(RB, 4)}, {'0' if ks == 0 else v(V_CACC + 4, 4)}"]
    cv = []
    for j in (1, 2, 3, 0):
        d = (d0, pt)[j >> 1] + 8 * (j & 1)
        for k in range(4):
            cv.append(f"v_cvt_pk_bf16_f32 v{we(j, ks) + k}, v{d + 2 * k}, v{d + 2 * k + 1}")
    return r1, r2, r3, pm, dm, cm, cv


XSLOT = {1: 2, 2: 3, 3: 3}


def xw(j, ks):
    return f"ds_write_b128 v{P_XW}, {v(we(j, ks), 4)} offset:{XSLOT[j] * 8192 + ks * 1024} ; @w:reg{XSLOT[j]} @def:xw"


def xr(j, ks):
    return f"ds_read_b128 {v(we(j, ks), 4)}, v{P_XR + j} offset:{XSLOT[j] * 8192 + ks * 1024} ; @def:xr"


def cpost():
    X = [V_CPK + r for r in range(4)]
    Y = [V_CACC + r for r in range(4)]
    Z = [V_CACC + 4 + r for r in range(4)]
    o = [f"v_lshlrev_b32 v{V_B1}, 16, v{V_B1} ; @r:ldS1b", f"v_mul_f32 v{V_B1}, s33, v{V_B1}"]
    for fn in (lambda r: f"v_sub_f32 v{Y[r]}, v{Z[r]}, v{Y[r]}",
               lambda r: f"v_fma_f32 v{Y[r]}, v{Y[r]}, s33, v{V_B1}",
               lambda r: f"v_and_b32 v{Z[r]}, 0xffff0000, v{Y[r]}",
               lambda r: f"v_sub_f32 v{Y[r]}, v{Y[r]}, v{Z[r]}",
               lambda r: f"v_cvt_pk_bf16_f32 v{X[r]}, v{Z[r]}, v{Y[r]}"):
        o += [fn(r) for r in range(4)]
    o.append(f"ds_write_b128 v{P_CW}, {v(V_CPK, 4)} ; @def:xw")
    o.append(f"ds_write_b128 v{P_CW}, {v(V_CPK, 4)} offset:2048 ; @def:xw")
    return o


def vwait(tag, extra=""):
    return f"s_waitcnt vmcnt({vmcount(tag)})"


def xbar():
    return ["s_nop 0 ; @fence @use:xw", "s_barrier ; @fence @use:xr"] + sstamp()


def boost(l, p=1000):
    return l + (" " if ";" in l else " ; ") + f"@p:{p}"


ZF = int(OPT.get("zf", 1))


def f0_reads():
    o = [f"v_bfe_u32 v{V_EN}, v{V_FA}, 8, 5 ; @r:ldH0", f"v_cmp_gt_u32 vcc, s32, v{V_EN}", f"v_cndmask_b32 v{V_EN}, 0, 1, vcc"]
    for ks in range(8):
        t = V_EN + 1 + (ks % 7)
        o.append(f"v_lshl_or_b32 v{t}, v{V_EN}, 20, v{V_FA + ks}")
        o.append(f"ds_read_b128 {a(A_F + 4 * ks, 4)}, v{t} offset:{SLOT[0] * 8192} ; @r:ldH0")
    return o


def f_reads(blk):
    f = A_F + 32 * (blk & 1)
    return [f"ds_read_b128 {a(f + 4 * ks, 4)}, v{V_FA + ks} offset:{SLOT[blk & 3] * 8192} ; @r:ldH{blk}" for ks in range(8)]


def p_g(sig):
    j, blk = sig & 3, sig >> 2
    f = A_F + 32 * (blk & 1)
    ac = AC[j]
    gm = [f"{M32} {v(ac, 16)}, {v(we(j, ks), 4)}, {a(f + 4 * ks, 4)}, {'0' if ks == 0 else v(ac, 16)}" for ks in range(8)]
    gm.append(f"{M32} {v(ac, 16)}, {v(V_CPK, 4)}, {a(ONES[j], 4)}, {v(ac, 16)}")
    return gm


KS = [kstep(ks) for ks in range(8)]
A(f"s_waitcnt vmcnt({vmcount('sm')})")
stamp(True)


def own(lst, st):
    return [[l + f" ; @y:rd{st} @use:rd{st}" if l.startswith("buffer") else l for l in g] for g in lst]


def trs(st):
    return [vwait(f"S{st}a")] + KS[2 * st][0] + KS[2 * st + 1][0] + [vwait(f"S{st}b")] + KS[2 * st][1] + KS[2 * st + 1][1]


def comp(ks):
    r1, r2, r3, pm, dm, cm, cv = KS[ks]
    return pm + dm + cm


def hot(groups):
    return [boost(l, 200000) for g in groups for l in g]


WOCC = int(OPT.get("wocc", 50))
GATE = int(OPT.get("gate", 8))


def wburst(n, last=False):
    o = [l + f" @occ:{WOCC}" if l.startswith("buffer") else l for l in hot(take(n))]
    if last:
        o[-1] += " @x:w1done"
    return o


def gated(ks):
    c = comp(ks)
    if ks >= GATE:
        c[0] += " ; @y:w1done"
    return c


def h0_piece(q, en):
    i = q & 3
    return [f"v_xad_u32 v{en}, v{V_K0}, {SQ[q]}, v{en}",
            f"buffer_load_dwordx4 v{en}, {s(SRD_H, 4)}, {SOFF[i]} offen offset:{1024 * i} {HIST_POL} lds"]


def h0_parts():
    rd1 = [f"ds_read_b128 v[56:59], v{V_ENA} offset:16 ; @r:list"]
    m1 = f"s_add_u32 m0, s14, {SLOT[0] * 8192 + 4096}"
    m0_ = f"s_add_u32 m0, s14, {SLOT[0] * 8192}"
    p7, p6 = h0_piece(7, 59), h0_piece(6, 58)
    first = [rd1, [m1, p7[0], vm(p7[1] + " ; @y:rd0 @use:rd0", "H0")], [p6[0], vm(p6[1], "H0")]]
    opt = []
    for k, (thr, mm, qs, regs, base) in enumerate(((24, m1, (5, 4), "v[56:57]", 52), (16, m0_, (3, 2), "v[6:7]", 4), (8, m0_, (1, 0), "v[4:5]", 4))):
        seq = [f"s_cmp_ge_u32 s32, {thr} ; @use:{regs}", f"s_cbranch_scc1 L_h0{k} ; @pend", mm]
        for q in qs:
            seq += h0_piece(q, base + q)
        CLUMPS[f"h0{k}"] = seq + [f"L_h0{k}:"]
        opt.append([f"buffer_clump_x4 {regs}, v{V_K0}, s32, m0"])
    rd0 = [f"ds_read_b128 v[4:7], v{V_ENA} ; @r:list"]
    return first, opt, rd0


def h1_piece(q):
    i = q & 3
    g = [f"ds_read_b128 v[0:3], v{V_ENA} offset:{128 + (q >> 2) * 16} ; @r:list"] if i == 0 else []
    g += [f"s_add_u32 m0, s14, {SLOT[1] * 8192 + (q >> 2) * 4096}"] if q in (0, 2, 4, 6) else []
    g += [f"v_xad_u32 v{i}, v{V_K0}, {SQ[q]}, v{i}",
          vm(f"buffer_load_dwordx4 v{i}, {s(SRD_H, 4)}, {SOFF[i]} offen offset:{1024 * i} {HIST_POL} lds" + (" ; @y:rd1 @use:rd1" if q == 0 else ""), "H1")]
    return g


NB0 = int(OPT.get("nb0", 5))
HO = int(OPT.get("ho", 0))
EARLY = int(OPT.get("early", 0))
tfs = [KS[k][2][2] for k in range(8)]
dgs = [KS[k][2][:2] for k in range(8)]
pd = lambda ks: KS[ks][3] + KS[ks][4]
cmm = lambda ks: KS[ks][5]
PREP = TP + RL + (wburst(NB0) if NB0 else []) + trs(0) + ["s_barrier ; @fence @w:tab @use:tab"] + sstamp() + dgs[0] + dgs[1] + tfs[:2]
HB = int(OPT.get("hb", 0))
WL = int(OPT.get("wl", 4))
PREP += wburst(20 - NPRE - NB0) + W2R + tfs[2:] + trs(1)
if HB:
    PREP += wburst(12 - WL) + (trs(2) if WL <= 4 else [])
    PREP += hot([h1_piece(q) for q in range(HB)]) + (trs(2) if WL > 4 else [])
    w_ = wburst(WL, True)
    if not w_[0].startswith("s_add_u32 m0"):
        raise RuntimeError("m0")
    PREP += w_
else:
    PREP += wburst(8) + trs(2) + wburst(4, True)
assert not pieces
_rd1 = None
h0f, h0o, h0r = h0_parts()
rest = list(range(HB, 8))
PREP += hot(h0f + [h0r] + [h1_piece(q) for q in rest[:2]]) + trs(3)
rest = rest[2:]
seq = []
cnt_after = []
for k in range(3):
    seq.append(h0o[k])
    cnt_after.append(len(rest))
    seq += [h1_piece(q) for q in rest[:2]]
    rest = rest[2:]
PREP += hot(seq)
CLUMPS["h0w"] = [f"s_waitcnt vmcnt({8 - HB})", "s_cmp_ge_u32 s32, 24", "s_cbranch_scc1 L_h0w ; @pend", f"s_waitcnt vmcnt({cnt_after[0]})",
                 "s_cmp_ge_u32 s32, 16", "s_cbranch_scc1 L_h0w ; @pend", f"s_waitcnt vmcnt({cnt_after[2]})", "L_h0w:"]
PREP += pd(0) + cmm(0) + pd(1) + cmm(1) + dgs[2] + KS[0][6]
for ks in range(2, 8):
    PREP += (cmm(ks) + cmm(ks + 1) if ks % 2 == 0 else []) + pd(ks) + (dgs[ks + 1] if ks < 7 else [])
    PREP += (cpost() if ks == 7 else []) + mix(KS[ks - 1][6], [xw(1, ks - 2), xw(2, ks - 2)], 8, 1)
left = KS[7][6]
b2l = [f"v_lshlrev_b32 v{V_B2 + r}, 16, v{V_B2L} ; @r:ldS1b" for r in range(4)]
def tr_reads(blk):
    t = A_TR + 32 * (blk & 1)
    return [f"ds_read_b64_tr_b16 {a(t + 4 * dt + 2 * h2, 2)}, v{V_TA + dt} offset:{SLOT[blk & 3] * 8192 + 512 * h2} ; @r:ldH{blk}"
            for dt in range(8) for h2 in range(2)]


if EARLY:
    PREP += [xw(1, 6), xw(2, 6)] + left[:4] + [xw(1, 7)] + left[4:8] + [xw(2, 7)] + left[8:] + b2l
    PREP += ["buffer_clump_st s32 ; h0w @w:ldH0"] + (f0_reads() if ZF else f_reads(0)) + tr_reads(0)[:6]
else:
    PREP += [xw(1, 6), xw(2, 6)] + ["buffer_clump_st s32 ; h0w @w:ldH0"] + (f0_reads() if ZF else f_reads(0)) + left[:4] + [xw(1, 7)] + left[4:8] + [xw(2, 7)] + left[8:] + b2l
PREP += xbar()


def p_e(p):
    c = AC[p & 3]
    ex = [f"v_exp_f32 v{c + r}, v{c + r}" for r in range(16)]
    ex.append(boost(f"{M32} {v(c, 16)}, {a(A_HALF, 4)}, {a(ONES[0], 4)}, {v(c, 16)}"))
    return ex


def p_r(p):
    rc = []
    j = p & 3
    c = AC[j]
    for k in range(8):
        rc.append(f"v_rcp_f32 v{c + 2 * k}, v{c + 2 * k}")
        rc.append(f"v_rcp_f32 v{c + 2 * k + 1}, v{c + 2 * k + 1}")
        rc.append(f"v_cvt_pk_bf16_f32 v{V_HP + k}, v{c + 2 * k}, v{c + 2 * k + 1}")
        if k % 4 == 3:
            u = k // 4
            q = 2 * j + u
            rc.append(boost(f"{M16} {v(V_SC, 4)}, {v(V_HP + 4 * u, 4)}, {a(A_W2 + 4 * q, 4)}, {v(V_B2, 4) if q == 0 else v(V_SC, 4)}"))
    return rc


def tr_reads(blk):
    t = A_TR + 32 * (blk & 1)
    return [f"ds_read_b64_tr_b16 {a(t + 4 * dt + 2 * h2, 2)}, v{V_TA + dt} offset:{SLOT[blk & 3] * 8192 + 512 * h2} ; @r:ldH{blk}"
            for dt in range(8) for h2 in range(2)]


def fin(blk):
    o = [f"v_mul_legacy_f32 v{V_SC + r}, v{V_SC + r}, v{V_MVAL + r}" for r in range(4)]
    o.append(f"v_cvt_pk_bf16_f32 v{V_APK}, v{V_SC}, v{V_SC + 1}")
    o.append(f"v_cvt_pk_bf16_f32 v{V_APK + 1}, v{V_SC + 2}, v{V_SC + 3}")
    o.append(f"v_mov_b32_dpp v{V_APK + 2}, v{V_APK} quad_perm:[1,0,3,2] row_mask:0xf bank_mask:0xf")
    o.append(f"v_mov_b32_dpp v{V_APK + 3}, v{V_APK + 1} quad_perm:[1,0,3,2] row_mask:0xf bank_mask:0xf")
    t = A_TR + 32 * (blk & 1)
    g2 = [f"{M16} {a(A_O + 4 * dt, 4)}, {v(V_APK, 4)}, {a(t + 4 * dt, 4)}, {'0' if blk == 0 else a(A_O + 4 * dt, 4)}" for dt in (0, 4, 1, 5, 2, 6, 3, 7)]
    return o, g2


FJ = int(OPT.get('fj', 3))
FAST = int(OPT.get('fast', 1))


def step(sig, nb=4):
    last = 4 * nb - 1
    ok = lambda p: 0 <= p <= last
    j, blk = sig & 3, sig >> 2
    o = []
    x = []
    if sig == 0:
        x = [xr(1, k) for k in range(8)] + [f"ds_read_b32 v{V_CPK + j_}, v{P_CW} offset:{(4 - j_) * 512 + 4 * j_}" for j_ in (1, 2, 3)]
        x += [xr(2, k) for k in range(8)]
        o += x
        x = []
    elif sig == 1:
        o += xbar()
        x = [xw(3, k) for k in range(8)]
    elif sig == 2:
        o += xbar()
        x = [xr(3, k) for k in range(8)]
    elif sig == 4 - FAST:
        o += xbar()
    elif j == 0 and sig:
        o += sstamp()
    gm = p_g(sig) if ok(sig) else []
    ex = p_e(sig - 1) if ok(sig - 1) else []
    rc = p_r(sig - 2) if ok(sig - 2) else []
    HACK = int(OPT.get("hack", 0))
    if HACK:
        drop = (0, 2) if HACK == 1 else (0, 1, 2, 3)
        if sig - 1 in drop:
            ex = []
        if sig - 2 in drop:
            rc = []
    ds = list(x)
    if ok(sig):
        tcut = {1: (0, 4, 8, 12, 16), 2: (0, 6, 12, 14, 16), 3: (0, 6, 11, 16, 16)}[FJ]
        ds += tr_reads(blk)[tcut[j]:tcut[j + 1]] if not (EARLY and sig == 0) else []
        if blk + 1 < nb and j >= FJ:
            if j == FJ:
                o.append(vwait(f"H{blk + 1}"))
            cut = {1: (0, 0, 3, 6, 8), 2: (0, 0, 0, 5, 8), 3: (0, 0, 0, 0, 8)}[FJ]
            ds = f_reads(blk + 1)[cut[j]:cut[j + 1]] + ds
        if j == 3:
            ds.append(f"ds_read_b128 {v(V_MVAL, 4)}, v{V_MVA} offset:{4096 + blk * 128}")
    fv, g2 = fin(blk - 1) if (j == 1 and blk >= 1) else ([], [])
    ld = []
    if FAST:
        B = (sig + 9) >> 2
        jj = (sig + 9) & 3
        if sig in (1, 2):
            ld = hist_load(2, sig - 1)
        elif sig >= 3 and B < nb:
            ld = hist_load(B, jj >> 1, 2 * (jj & 1), 2 * (jj & 1) + 2)
    elif blk + 2 < nb:
        ld = hist_load(blk + 2, j >> 1, 2 * (j & 1), 2 * (j & 1) + 2) if sig > 1 else (hist_load(2, 0) if sig == 1 else [])
    va = mixg(rc + ex[:6] + fv + ex[6:], ld, 12, 2) if sig < last else ex + rc + fv
    o += gm + mix(va, ds, max(1, min(5, len(va) // max(1, len(ds)))), 0) + g2
    return o


HEAD = list(PREP)
SX = 8 - FAST
for sig in range(0, SX):
    HEAD += step(sig)
emit_sched(HEAD, "head", trace=VERB > 3)
A("s_waitcnt lgkmcnt(0)")
A("s_cmp_gt_u32 s13, 128")
A("s_cbranch_scc1 L_wrap")
A("L_tail:")
vm_end = list(vm_log)
TAIL = []
for sig in range(SX, 18):
    TAIL += step(sig)
TAIL += ["v_mbcnt_lo_u32_b32 v66, -1, 0", "v_mbcnt_hi_u32_b32 v66, -1, v66", "v_lshlrev_b32 v66, 1, v66"]
for g in range(4):
    TAIL += [f"v_accvgpr_read_b32 v{68 + 2 * g}, {a(A_O + 4 * g)}", f"v_accvgpr_read_b32 v{69 + 2 * g}, {a(A_O + 4 * (g + 4))}",
             f"v_cvt_pk_bf16_f32 v{64 if g == 0 else 68 + 2 * g}, v{68 + 2 * g}, v{69 + 2 * g}"]
    if g:
        TAIL.append(f"v_mov_b32_dpp v64, v{68 + 2 * g} quad_perm:[0,1,2,3] row_mask:{hex(1 << g)} bank_mask:0xf")
emit_sched(TAIL, "tail", trace=VERB == 3)
A(f"buffer_store_short v64, v66, {s(SRD_O, 4)}, 0 offen")
A(f"buffer_store_short_d16_hi v64, v66, {s(SRD_O, 4)}, 0 offen offset:128")
if STAMP:
    A("s_waitcnt vmcnt(0)")
    stamp(True, True)
    stamp(True, True)
    nstamp[0] -= 1
    A("s_lshl2_add_u32 s7, s2, s5")
    A("s_lshl_b32 s7, s7, 8")
    A("v_mbcnt_lo_u32_b32 v20, -1, 0")
    A("v_mbcnt_hi_u32_b32 v20, -1, v20")
    A("v_lshl_add_u32 v20, v20, 2, s7")
    A(f"global_store_dword v20, v{V_ST}, s[84:85]")
    print("nstamps", nstamp[0])
if SPIN:
    A("L_spin:")
    A("s_memrealtime s[98:99]")
    A("s_waitcnt lgkmcnt(0)")
    A("s_sub_u32 s98, s98, s96")
    A(f"s_cmp_lt_u32 s98, {SPIN}")
    A("s_cbranch_scc1 L_spin")
A("L_end:")
A("s_endpgm")
A("L_codeend:")
A("L_wrap:")
STAMP = 0
vm_log[:] = vm_end
WR = []
for sig in range(SX, SX + 16):
    WR += step(sig, nb=8)
emit_sched(WR, "wrap")
A("s_waitcnt lgkmcnt(0)")
A(f"v_add_u32 v{V_MVA}, 0x200, v{V_MVA}")
A("s_branch L_tail")

auto_lgkm(A)
npad = A.pad(verbose=VERB > 1)
FP = int(OPT.get("fp", 0))
if FP:
    fs = int(OPT.get("fs", 12))
    new, k, cnt = [], 0, 0
    log = []
    for x in A.ins:
        if x.label == "L_end":
            new += [Ins(t) for t in ("s_waitcnt vmcnt(0) lgkmcnt(0)", "s_load_dwordx2 s[84:85], s[0:1], 72", "s_lshl2_add_u32 s7, s2, s5", "s_lshl_b32 s7, s7, 8",
                                     "v_mbcnt_lo_u32_b32 v20, -1, 0", "v_mbcnt_hi_u32_b32 v20, -1, v20", "v_lshl_add_u32 v20, v20, 2, s7",
                                     "s_waitcnt lgkmcnt(0)", f"global_store_dword v20, v{V_ST}, s[84:85]")]
        if x.kind not in ("label", "directive"):
            if cnt >= fs and (cnt - fs) % FP == 0 and k < 66:
                if k >= 2:
                    new.append(Ins(f"v_writelane_b32 v{V_ST}, s{86 + 2 * ((k - 2) % 4)}, {k - 2}"))
                if k < 64:
                    new.append(Ins(f"s_memtime s[{86 + 2 * (k % 4)}:{87 + 2 * (k % 4)}]"))
                    log.append([])
                k += 1
            cnt += 1
            if log and k <= 64:
                log[-1].append(x.text.split(";")[0].strip())
        new.append(x)
    A.ins = new
    import json
    json.dump(log, open(sys.argv[1] + ".log", "w"))

ref = open("cdna_kernels/%s.s.ref" % NAME).read().split("\n")
head_ = [l for l in ref if l.startswith(";") and "@launch" not in l and "Override" not in l and "grid=ceil" not in l]
out = "\n".join(head_) + "\n"
out += f"; @launch grid=(256,1,1) block=(256,1,1) lds={LDS_BYTES}\n"
out += '.amdgcn_target "amdgcn-amd-amdhsa--gfx950"\n.text\n'
out += f".globl {NAME}_kernel\n.p2align 8\n.type {NAME}_kernel,@function\n"
out += "\n".join(l.split(";")[0].rstrip() for l in A.text().split("\n")) + "\n"
out += f""".section .rodata,"a"
.p2align 6
.amdhsa_kernel {NAME}_kernel
  .amdhsa_next_free_vgpr {NVG + NAG}
  .amdhsa_next_free_sgpr 102
  .amdhsa_accum_offset {NVG}
  .amdhsa_group_segment_fixed_size 0
  .amdhsa_kernarg_size 80
  .amdhsa_user_sgpr_count 2
  .amdhsa_user_sgpr_kernarg_segment_ptr 1
  .amdhsa_system_sgpr_workgroup_id_x 1
.end_amdhsa_kernel
"""
open(sys.argv[1], "w").write(out)
print(f"wrote {sys.argv[1]}: {len(A.ins)} lines, {npad} pad states")
```
